```python
import torch

def _softmax(x, axis=-1):
    return torch.softmax(x, dim=axis)

def _gelu(x):
    return torch.nn.functional.gelu(x, approximate='tanh')

def _silu(x):
    return torch.nn.functional.silu(x)

def _sigmoid(x):
    return torch.sigmoid(x)

def _layernorm(x, axis=-1, eps=1e-05):
    m = x.mean(dim=axis, keepdim=True)
    v = x.var(dim=axis, keepdim=True, unbiased=False)
    return (x - m) / torch.sqrt(v + eps)

def _scatter_add(tgt, idx, src, axis=0):
    return tgt.clone().index_add_(axis, idx, src)

def _segment_sum(src, seg, n):
    out = torch.zeros((n,) + src.shape[1:], dtype=src.dtype)
    return out.index_add_(0, seg, src)

def _pad(x, pw):
    flat = tuple((v for pair in reversed(pw) for v in pair))
    return torch.nn.functional.pad(x, flat)
kernel_name = 'gated_mix__memory_aug_recurrent_mem_tr__glu_gated_bilinear__prompt'

def setup_inputs():

    _w = lambda a: (lambda t: t.to(torch.bfloat16) if t.is_floating_point() else t)(torch.as_tensor(a))

    def _A_setup():
        B, S, Dm = (1, 2048, 576)
        H, Dh = (32, 128)
        M, seg = (8, 32)
        seg = min(seg, S)
        S = S // seg * seg
        return {'x': _w((lambda *s: torch.randn(*s, dtype=torch.bfloat16) * 0.05)(B, S, Dm)), 'mem0': _w((lambda *s: torch.randn(*s, dtype=torch.bfloat16) * 0.4)(B, M, Dm)), 'Wq': _w((lambda *s: torch.randn(*s, dtype=torch.bfloat16) * 6.4)(Dm, H, Dh) * Dm ** (-0.5)), 'Wk': _w((lambda *s: torch.randn(*s, dtype=torch.bfloat16) * 6.4)(Dm, H, Dh) * Dm ** (-0.5)), 'Wv': _w((lambda *s: torch.randn(*s, dtype=torch.bfloat16) * 0.4)(Dm, H, Dh) * Dm ** (-0.5)), 'Wo': _w((lambda *s: torch.randn(*s, dtype=torch.bfloat16) * 0.4)(H, Dh, Dm) * (H * Dh) ** (-0.5)), 'seg_len': seg}
    _A_in = _A_setup()

    def _B_setup():
        B, S, D, F = (1, 2048, 576, 4608)
        return {'x': _w((lambda *s: torch.randn(*s, dtype=torch.bfloat16) * 0.05)(B, S, D)), 'w_gate': _w((lambda *s: torch.randn(*s, dtype=torch.bfloat16) * 1.6)(D, F) * D ** (-0.5)), 'w_up': _w((lambda *s: torch.randn(*s, dtype=torch.bfloat16) * 1.6)(D, F) * D ** (-0.5)), 'w_down': _w((lambda *s: torch.randn(*s, dtype=torch.bfloat16) * 1.6)(F, D) * F ** (-0.5))}
    _B_in = _B_setup()
    return {'A_x': _A_in['x'], 'A_mem0': _A_in['mem0'], 'A_Wq': _A_in['Wq'], 'A_Wk': _A_in['Wk'], 'A_Wv': _A_in['Wv'], 'A_Wo': _A_in['Wo'], 'A_seg_len': _A_in['seg_len'], 'B_x': _B_in['x'], 'B_w_gate': _B_in['w_gate'], 'B_w_up': _B_in['w_up'], 'B_w_down': _B_in['w_down'], 'gate_w': _w((lambda *s: torch.randn(*s, dtype=torch.bfloat16) * 0.05)(576) * 16.0)}

def reference(A_x, A_mem0, A_Wq, A_Wk, A_Wv, A_Wo, A_seg_len, B_x, B_w_gate, B_w_up, B_w_down, gate_w):

    def _A_ref(x, mem0, Wq, Wk, Wv, Wo, seg_len):
        B, S, Dm = x.shape
        H, Dh = (Wq.shape[1], Wq.shape[2])
        M = mem0.shape[1]
        scale = Dh ** (-0.5)
        n_seg = S // seg_len
        L = M + seg_len
        idx = torch.arange(L)
        mask = (idx[:, None] < M) | (idx[:, None] >= idx[None, :])
        mem = mem0
        outs = []
        for s in range(n_seg):
            xs = x[:, s * seg_len:(s + 1) * seg_len, :].clone()
            h = torch.concatenate([mem, xs], axis=1)
            q = torch.einsum('btd,dhe->bhte', h, Wq)
            k = torch.einsum('btd,dhe->bhte', h, Wk)
            v = torch.einsum('btd,dhe->bhte', h, Wv)
            scores = torch.einsum('bhqe,bhke->bhqk', q, k) * scale
            scores = torch.where(mask[None, None], scores, -1000000000.0)
            p = _softmax(scores, axis=-1)
            o = torch.einsum('bhqk,bhke->bhqe', p, v)
            o = torch.einsum('bhte,hed->btd', o, Wo)
            mem = o[:, :M, :].clone()
            outs.append(o[:, M:, :])
        return torch.concatenate(outs, axis=1)

    def _B_ref(x, w_gate, w_up, w_down):
        g = torch.einsum('bsd,df->bsf', x, w_gate)
        u = torch.einsum('bsd,df->bsf', x, w_up)
        h = g * u
        return torch.einsum('bsf,fd->bsd', h, w_down)
    x = A_x
    g = _sigmoid((x * gate_w).sum(-1, keepdims=True))
    a = _A_ref(x, A_mem0, A_Wq, A_Wk, A_Wv, A_Wo, A_seg_len)
    b = _B_ref(x, B_w_gate, B_w_up, B_w_down)
    return g * a + (1 - g) * b
```

```python
import re

def regs_of(tok):
    tok = tok.strip()
    tok = tok.lstrip('-')
    if tok.startswith('abs(') or tok.startswith('|'):
        tok = tok.replace('abs(', '').replace(')', '').replace('|', '')
    m = re.fullmatch(r'([vas])\[(\d+):(\d+)\]', tok)
    if m:
        return [(m.group(1), i) for i in range(int(m.group(2)), int(m.group(3)) + 1)]
    m = re.fullmatch(r'([vas])(\d+)', tok)
    if m:
        return [(m.group(1), int(m.group(2)))]
    if tok == 'vcc':
        return [('s', 'vcc')]
    if tok in ('exec', 'exec_lo', 'exec_hi'):
        return [('s', 'exec')]
    if tok == 'm0':
        return [('s', 'm0')]
    return []

TRANS = ('v_exp_f32', 'v_log_f32', 'v_rcp_f32', 'v_rsq_f32', 'v_sqrt_f32', 'v_sin_f32', 'v_cos_f32', 'v_rcp_iflag_f32')

class Ins:
    def __init__(self, text):
        self.text = text
        t = text.split(';')[0].strip()
        self.is_label = t.endswith(':')
        self.is_dir = t.startswith('.') or t == ''
        self.op = '' if (self.is_label or self.is_dir) else t.split()[0]
        rest = t[len(self.op):].strip() if self.op else ''
        ops = [o.strip() for o in rest.split(',')] if rest else []
        if ops:
            last = ops[-1].split()
            ops[-1] = last[0] if last else ''
            self.mods = last[1:]
        else:
            self.mods = []
        self.ops = ops
        op = self.op
        self.kind = 'other'
        self.w = []; self.r = []
        self.passes = 0
        self.srcC = []
        R = lambda i: regs_of(ops[i]) if i < len(ops) else []
        if op.startswith('v_mfma') or op.startswith('v_smfmac'):
            self.kind = 'mfma'
            self.passes = 8 if '32x32' in op else 4
            self.w = R(0)
            if op.startswith('v_smfmac'):
                self.srcC = R(0); self.ab = R(1) + R(2) + R(3)
            else:
                self.srcC = R(3); self.ab = R(1) + R(2)
            self.r = self.ab + self.srcC
        elif op.startswith('v_'):
            self.kind = 'valu'
            if op.startswith('v_permlane') and 'swap' in op:
                self.w = R(0) + R(1); self.r = R(0) + R(1)
            elif op.startswith('v_cmp'):
                self.w = R(0); self.r = sum((R(i) for i in range(1, len(ops))), [])
            elif op.startswith('v_readfirstlane') or op.startswith('v_readlane'):
                self.w = R(0); self.r = sum((R(i) for i in range(1, len(ops))), [])
            elif op.startswith('v_add_co') or op.startswith('v_addc_co') or op.startswith('v_sub_co'):
                self.w = R(0) + R(1); self.r = sum((R(i) for i in range(2, len(ops))), [])
            else:
                self.w = R(0); self.r = sum((R(i) for i in range(1, len(ops))), [])
                if op.startswith('v_fmac') or op.startswith('v_dot2c') or op.startswith('v_writelane'):
                    self.r += R(0)
                if op.startswith('v_cndmask') and len(ops) == 3:
                    self.r += [('s', 'vcc')]
        elif op.startswith('ds_'):
            self.kind = 'ds'
            if op.startswith('ds_read') or op.startswith('ds_bpermute') or op.startswith('ds_permute') or op.startswith('ds_swizzle'):
                self.w = R(0); self.r = sum((R(i) for i in range(1, len(ops))), [])
            else:
                self.r = sum((R(i) for i in range(0, len(ops))), [])
        elif op.startswith('buffer_') or op.startswith('global_'):
            self.kind = 'vmem'
            self.lds = 'lds' in self.mods
            if op in ('buffer_inv', 'buffer_wbl2'):
                pass
            elif 'load' in op and not self.lds:
                self.w = R(0); self.r = sum((R(i) for i in range(1, len(ops))), [])
            elif 'atomic' in op and 'sc0' in self.mods:
                self.w = R(0); self.r = sum((R(i) for i in range(0, len(ops))), [])
            else:
                self.r = sum((R(i) for i in range(0, len(ops))), [])
                if self.lds: self.r += [('s', 'm0')]
        elif op.startswith('s_'):
            self.kind = 'salu'
            if op in ('s_nop', 's_waitcnt', 's_barrier', 's_branch', 's_endpgm', 's_setprio', 's_sleep') or op.startswith('s_cbranch') or op.startswith('s_cmp') or op.startswith('s_bitcmp'):
                self.r = sum((R(i) for i in range(0, len(ops))), [])
            else:
                self.w = R(0); self.r = sum((R(i) for i in range(1, len(ops))), [])
        self.dpp = any(m.startswith('row_') or m.startswith('quad_perm') or m.startswith('wave_') for m in self.mods) or op.endswith('_dpp')
    def states(self):
        if self.is_label or self.is_dir: return 0
        if self.op == 's_nop': return int(self.ops[0], 0) + 1
        return 1

def need(prod, cons):
    n = 0
    pw = set(prod.w);
    cr = set(cons.r); cw = set(cons.w)
    vw = set(x for x in pw if x[0] in 'va')
    sw = set(x for x in pw if x[0] == 's')
    if prod.kind == 'valu':
        if cons.kind == 'mfma' and vw & cr: n = max(n, 2)
        if cons.kind == 'valu':
            if cons.op.startswith('v_permlane') and vw & cr: n = max(n, 2)
            if cons.dpp and vw & cr: n = max(n, 2)
            if (cons.op.startswith('v_readfirstlane') or cons.op.startswith('v_readlane')) and vw & cr: n = max(n, 1)
            if prod.op.split('_e')[0] in TRANS or prod.op in TRANS:
                if vw & cr and cons.op not in TRANS: n = max(n, 1)
            if sw & cr: n = max(n, 2)
            if sw & cr and (cons.op.startswith('v_readlane') or cons.op.startswith('v_writelane')): n = max(n, 4)
        if cons.kind == 'vmem' and sw & cr: n = max(n, 5)
        if cons.kind == 'salu' and sw & cr and not cons.op.startswith('s_cbranch'): n = max(n, 1)
    if prod.kind == 'mfma':
        p = prod.passes
        full = {4: 8, 8: 12}[p]; ovl = {4: 6, 8: 10}[p]; war = {4: 3, 8: 7}[p]
        if cons.kind == 'mfma':
            if pw & set(cons.ab): n = max(n, full)
            if pw & set(cons.srcC):
                if not (prod.w == cons.srcC and prod.op == cons.op): n = max(n, ovl)
            elif pw & cw and prod.w != cons.w:
                n = max(n, ovl)
        elif cons.kind in ('valu', 'ds', 'vmem'):
            if pw & (cr | cw): n = max(n, full)
            if cons.kind == 'valu' and set(prod.srcC) & cw: n = max(n, war)
    if prod.kind == 'vmem' and 'store' in prod.op and ('x4' in prod.op or 'x3' in prod.op):
        data = set(regs_of(prod.ops[0])) if prod.op.startswith('buffer') else set(regs_of(prod.ops[1]))
        if data & cw: n = max(n, 2 if cons.kind == 'valu' else 1)
    if prod.kind == 'salu' and ('s', 'm0') in pw and cons.kind == 'vmem' and getattr(cons, 'lds', False):
        n = max(n, 1)
    return n

class Asm:
    def __init__(self):
        self.lines = []
        self.lgkm = []
        self.vm = []
        self.nops = 0
        self.log = []
        self._uid = 0
    def raw(self, text):
        for t in text.split('\n'):
            self.lines.append(t)
    def __call__(self, text, tag=None):
        for t in text.strip('\n').split('\n'):
            t = t.strip()
            if not t: continue
            self.lines.append('    ' + t if not t.endswith(':') else t)
            op = t.split()[0]
            if op.startswith('ds_'):
                self.lgkm.append(tag)
            elif op.startswith('buffer_') or op.startswith('global_'):
                if op not in ('buffer_inv',):
                    self.vm.append(tag)
    def label(self, name): self.lines.append(name + ':')
    def uid(self, p='L'):
        self._uid += 1; return f'{p}_{self._uid}'
    def wait_lgkm(self, tag=None):
        if tag is None:
            n = 0
        else:
            idx = max(i for i, t in enumerate(self.lgkm) if t == tag) if tag in self.lgkm else None
            if idx is None: return
            n = len(self.lgkm) - 1 - idx
        assert n <= 15, n
        self.lines.append(f'    s_waitcnt lgkmcnt({n})')
        self.lgkm = self.lgkm[len(self.lgkm) - n:] if n else []
    def wait_vm(self, tag=None):
        if tag is None:
            n = 0
        else:
            idx = max(i for i, t in enumerate(self.vm) if t == tag) if tag in self.vm else None
            if idx is None: return
            n = len(self.vm) - 1 - idx
        assert n <= 63, n
        self.lines.append(f'    s_waitcnt vmcnt({n})')
        self.vm = self.vm[len(self.vm) - n:] if n else []
    def reset_counters(self):
        self.lgkm = []; self.vm = []
    def hoist(self):
        ins = [Ins(l) for l in self.lines]
        changed = True
        def movable(x):
            if x.is_label or x.is_dir: return False
            if x.kind not in ('ds', 'vmem', 'salu'): return False
            if x.op in ('s_barrier', 's_branch', 's_endpgm', 's_nop', 's_memtime', 's_memrealtime') or x.op.startswith('s_cbranch'): return False
            if ('s', 'exec') in x.w or ('s', 'exec') in x.r or ('s', 'vcc') in x.w or ('s', 'vcc') in x.r: return False
            return True
        i = 0
        n = len(ins)
        last_mfma = -100
        for i in range(n):
            x = ins[i]
            if x.kind == 'mfma': last_mfma = i; continue
            if not movable(x): continue
            j = i
            if x.op == 's_waitcnt' and sum(1 for y in ins[last_mfma+1:i] if y.kind == 'valu') > 1: continue
            while j - 1 > last_mfma and ins[j-1].kind == 'valu' and i - last_mfma <= 6:
                v = ins[j-1]
                if set(x.r) & set(v.w) or set(x.w) & (set(v.r) | set(v.w)): break
                if x.kind in ('ds', 'vmem'):
                    pass
                ins[j-1], ins[j] = ins[j], ins[j-1]; j -= 1
        self.lines = [x.text for x in ins]
    def finish(self, verbose=False):
        out = []; hist = []
        for ln in self.lines:
            ins = Ins(ln)
            if ins.is_label or ins.is_dir:
                out.append(ln); continue
            dist = 0; req = 0
            for p in reversed(hist):
                nd = need(p, ins)
                if nd > dist: req = max(req, nd - dist)
                dist += p.states()
                if dist >= 13: break
            if req:
                self.nops += req
                if verbose: self.log.append(f'nop {req} before: {ln.strip()}')
                k = req
                while k > 0:
                    c = min(k, 16)
                    nl = f'    s_nop {c-1}'
                    out.append(nl); hist.append(Ins(nl)); k -= c
            out.append(ln); hist.append(ins)
            if len(hist) > 40: hist = hist[-20:]
        return '\n'.join(out) + '\n'

def vr(b, n=1, f='v'):
    return f'{f}{b}' if n == 1 else f'{f}[{b}:{b+n-1}]'
```

```python
from asmlib import *
from layout import *
import struct
def f32(x): return struct.unpack('<I', struct.pack('<f', x))[0]
S_WS = 4
S_SEG, S_W, S_HEAD = 12, 13, 14
S_T0, S_T1, S_T2, S_T3 = 16, 17, 18, 19
S_LB = 20
S_C = 21
S_MK = 24
WS = f's[{S_WS}:{S_WS+3}]'
V_L16, V_RV, V_RM, V_RK, V_GA, V_OA = 1, 2, 3, 4, 5, 6
V_G = 8
V_T = 10
V_NEG = 7
V_K = 20
V_Q = 52
V_KM = 84
V_S = 100
V_A = 124
V_D = 172
LDS_PER_WAVE = 14336
class Att:
    def __init__(self, a, ldf='', stf='', lds_base=0):
        self.a = a; self.ldf = ldf; self.stf = stf; self.lds_base = lds_base
    def setup(self):
        a = self.a
        L, C, G, A_, T0, T1 = V_T, V_T+1, V_T+2, V_T+3, V_T+4, V_T+5
        a(f'''
        v_and_b32 v{L}, 63, v0
        v_and_b32 v{C}, 15, v{L}
        v_lshrrev_b32 v{G}, 4, v{L}
        v_lshrrev_b32 v{A_}, 2, v{C}
        v_lshlrev_b32 v{V_L16}, 4, v{L}
        s_mul_i32 s{S_LB}, s{S_W}, {LDS_PER_WAVE}
        s_add_u32 s{S_LB}, s{S_LB}, {self.lds_base}
        s_mov_b32 s{S_C}, {hex(f32(128 ** -0.5 * 1.4426950408889634))}
        v_mov_b32 v{V_NEG}, 0xf149f2ca
        v_and_b32 v{T0}, 3, v{L}
        v_lshlrev_b32 v{T0}, 4, v{T0}
        v_lshl_add_u32 v{T0}, v{A_}, 8, v{T0}
        v_add_u32 v{T0}, s{S_LB}, v{T0}
        v_lshl_add_u32 v{V_RM}, v{G}, 6, v{T0}
        v_add_u32 v{V_RM}, 8192, v{V_RM}
        v_lshrrev_b32 v{T1}, 1, v{G}
        v_lshl_add_u32 v{T0}, v{T1}, 10, v{T0}
        v_and_b32 v{T1}, 1, v{G}
        v_lshl_add_u32 v{V_RV}, v{T1}, 7, v{T0}
        v_and_b32 v{T0}, 1, v{A_}
        v_lshlrev_b32 v{T0}, 8, v{T0}
        v_lshl_add_u32 v{T0}, v{G}, 6, v{T0}
        v_lshrrev_b32 v{T1}, 1, v{A_}
        v_lshl_add_u32 v{T0}, v{T1}, 4, v{T0}
        v_and_b32 v{T1}, 1, v{L}
        v_lshl_add_u32 v{T0}, v{T1}, 3, v{T0}
        v_add_u32 v{T0}, s{S_LB}, v{T0}
        v_add_u32 v{V_RK}, 12288, v{T0}
        v_and_b32 v{T0}, 3, v{L}
        v_lshl_add_u32 v{T0}, v{A_}, 3, v{T0}
        v_lshlrev_b32 v{V_GA}, 2, v{T0}
        v_and_b32 v{T1}, 1, v{G}
        v_lshl_add_u32 v{T0}, v{T1}, 5, v{T0}
        v_lshlrev_b32 v{T0}, 4, v{T0}
        v_lshrrev_b32 v{T1}, 1, v{G}
        v_lshl_add_u32 v{V_OA}, v{T1}, 10, v{T0}
        ''')
        for u in range(2):
            for t in range(2):
                for r in range(4):
                    m = 0
                    for l in range(64):
                        c, g = l % 16, l // 16
                        if 8 * g + 4 * t + r <= 8 * (c // 4) + 4 * u + c % 4: m |= 1 << l
                    i = S_MK + 2 * (8 * u + 4 * t + r)
                    a(f's_mov_b32 s{i}, {hex(m & 0xffffffff)}\ns_mov_b32 s{i+1}, {hex(m >> 32)}')
    def task(self):
        a = self.a; ld = self.ldf
        kq = lambda b, k, t: vr(b + 4 * (2 * k + t), 4)
        a(f'''
        s_lshl_b32 s{S_T0}, s{S_SEG}, 5
        s_add_u32 s{S_T0}, s{S_T0}, s{S_HEAD}
        s_lshl_b32 s{S_T1}, s{S_T0}, 11
        s_add_u32 s{S_T1}, s{S_T1}, {WS_KM}
        s_add_u32 m0, s{S_LB}, 12288
        s_lshl_b32 s{S_T2}, s{S_T0}, 13
        buffer_load_dwordx4 v{V_L16}, {WS}, s{S_T1} offen {ld} lds
        buffer_load_dwordx4 v{V_L16}, {WS}, s{S_T1} offen offset:1024 {ld} lds
        ''', tag='km')
        for b, base, tg in ((V_Q, WS_QP, 'q'), (V_K, WS_KP, 'k')):
            a(f's_add_u32 s{S_T1}, s{S_T2}, {base}\ns_add_u32 s{S_T3}, s{S_T1}, 4096')
            for i in range(8):
                a(f'buffer_load_dwordx4 {vr(b + 4*i, 4)}, v{V_L16}, {WS}, s{S_T1 if i < 4 else S_T3} offen offset:{1024*(i%4)} {ld}', tag=tg)
        a(f's_lshl_b32 s{S_T1}, s{S_SEG}, 7\ns_add_u32 s{S_T1}, s{S_T1}, {WS_G}')
        for u in range(2): a(f'buffer_load_dword v{V_G+u}, v{V_GA}, {WS}, s{S_T1} offen offset:{16*u} {ld}', tag='g')
        a(f's_add_u32 s{S_T1}, s{S_T2}, {WS_VP}\ns_mov_b32 m0, s{S_LB}\ns_add_u32 s{S_T3}, s{S_T1}, 4096')
        for i in range(4): a(f'buffer_load_dwordx4 v{V_L16}, {WS}, s{S_T1} offen offset:{1024*i} {ld} lds', tag='v')
        a(f's_add_u32 m0, s{S_LB}, 4096\ns_lshl_b32 s{S_T1}, s{S_T0}, 12')
        for i in range(4): a(f'buffer_load_dwordx4 v{V_L16}, {WS}, s{S_T3} offen offset:{1024*i} {ld} lds', tag='v')
        a(f's_add_u32 m0, s{S_LB}, 8192\ns_add_u32 s{S_T1}, s{S_T1}, {WS_VM}')
        for i in range(4): a(f'buffer_load_dwordx4 v{V_L16}, {WS}, s{S_T1} offen offset:{1024*i} {ld} lds', tag='v')
        a.wait_vm('km')
        for k in range(4):
            for y in range(2): a(f'ds_read_b64_tr_b16 {vr(V_KM + 4*k + 2*y, 2)}, v{V_RK} offset:{512*k + 32*y}')
        a.wait_vm('k')
        SX = lambda u, t: V_S + 12 * u + 4 * t
        for k in range(4):
            for u in range(2):
                for t in range(2):
                    d = vr(SX(u, t), 4)
                    a(f'v_mfma_f32_16x16x32_bf16 {d}, {kq(V_K, k, t)}, {kq(V_Q, k, u)}, {d if k else 0}')
        a.wait_lgkm()
        for k in range(4):
            for u in range(2):
                d = vr(SX(u, 2), 4)
                a(f'v_mfma_f32_16x16x32_bf16 {d}, {vr(V_KM + 4*k, 4)}, {kq(V_Q, k, u)}, {d if k else 0}')
        a.wait_vm('v')
        for et in range(8):
            o = 2048 * (et // 2) + 8 * (et % 2)
            for y in range(2): a(f'ds_read_b64_tr_b16 {vr(V_A + 6*et + 2*y, 2)}, v{V_RV} offset:{o + 64*y}')
            a(f'ds_read_b64_tr_b16 {vr(V_A + 6*et + 4, 2)}, v{V_RM} offset:{1024*(et//2) + 8*(et%2)}')
            if et == 4: a('s_waitcnt lgkmcnt(8)')
        for u in range(2):
            S = [SX(u, 0) + i for i in range(12)]
            MX, TT, NM = V_T + 3 * u, V_T + 3 * u + 1, V_T + 3 * u + 2
            for i in range(8):
                m = S_MK + 2 * (8 * u + i)
                a(f'v_cndmask_b32 v{S[i]}, v{V_NEG}, v{S[i]}, s[{m}:{m+1}]')
            a(f'v_max3_f32 v{MX}, v{S[0]}, v{S[1]}, v{S[2]}')
            for i in (3, 5, 7, 9): a(f'v_max3_f32 v{MX}, v{MX}, v{S[i]}, v{S[i+1]}')
            a(f'v_max_f32 v{MX}, v{MX}, v{S[11]}')
            for sw in ('16', '32'):
                a(f'v_mov_b32 v{TT}, v{MX}\nv_permlane{sw}_swap_b32 v{MX}, v{TT}\nv_max_f32 v{MX}, v{MX}, v{TT}')
            a(f'v_mul_f32_e64 v{NM}, -s{S_C}, v{MX}')
            for r in S: a(f'v_fma_f32 v{r}, v{r}, s{S_C}, v{NM}')
            for r in S: a(f'v_exp_f32 v{r}, v{r}')
            a(f'v_add_f32 v{MX}, v{S[8]}, v{S[9]}\nv_add_f32 v{TT}, v{S[10]}, v{S[11]}\nv_add_f32 v{MX}, v{MX}, v{TT}\nv_mul_f32 v{MX}, 0.5, v{MX}')
            for i in range(8): a(f'v_add_f32 v{MX}, v{MX}, v{S[i]}')
            for sw in ('16', '32'):
                a(f'v_mov_b32 v{TT}, v{MX}\nv_permlane{sw}_swap_b32 v{MX}, v{TT}\nv_add_f32 v{MX}, v{MX}, v{TT}')
            a(f'v_rcp_f32 v{MX}, v{MX}\nv_mul_f32 v{MX}, v{MX}, v{V_G+u}')
            for r in S: a(f'v_mul_f32 v{r}, v{r}, v{MX}')
            for i in range(6): a(f'v_cvt_pk_bf16_f32 v{S[i]}, v{S[2*i]}, v{S[2*i+1]}')
        a.wait_lgkm()
        D = lambda u, et: V_D + 4 * (8 * u + et)
        for u in range(2):
            for et in range(8): a(f'v_mfma_f32_16x16x32_bf16 {vr(D(u, et), 4)}, {vr(V_A + 6*et, 4)}, {vr(SX(u, 0), 4)}, 0')
        for u in range(2):
            for et in range(8): a(f'v_mfma_f32_16x16x16_bf16 {vr(D(u, et), 4)}, {vr(V_A + 6*et + 4, 2)}, {vr(SX(u, 1), 2)}, {vr(D(u, et), 4)}')
        a(f'''
        s_lshl_b32 s{S_T1}, s{S_T0}, 13
        s_add_u32 s{S_T1}, s{S_T1}, {WS_O}
        s_add_u32 s{S_T3}, s{S_T1}, 4096
        ''')
        for u in range(2):
            for j in range(4):
                d = D(u, 2 * j)
                for i in range(4): a(f'v_cvt_pk_bf16_f32 v{d+i}, v{d+2*i}, v{d+2*i+1}')
                a(f'buffer_store_dwordx4 {vr(d, 4)}, v{V_OA}, {WS}, s{S_T1 if j < 2 else S_T3} offen offset:{2048*(j%2) + 64*u} {self.stf}')
        a.reset_counters()
```

```python
from asmlib import *
from layout import *
import struct

L_M = 131072
L_KX = L_M + 9216
L_VX = L_KX + 8192
L_X = L_VX + 8192
XS = 1160
L_CHALF = L_X + 5120
L_CZERO = L_CHALF + 1024
L_END = L_CZERO + 1024
assert L_END == 163840
IDX, VWL, VB, VBD, VXW, VTR, VTRK, VTRZ, VVX, VPST, VRD, VMT = range(12)
def Q(i): return 12 + 4 * i
def q4(i): return vr(Q(i), 4)
def q8(i): return vr(Q(i), 8)
S_WS = 4
S_DBG = 8
S_H, S_W, S_STEP = 12, 13, 14
S_RD = 16
S_PART, S_MLD, S_MST = 20, 21, 22
S_HAS = 23
S_MSK = 24
S_LO = 26
S_C, S_SPIN = 28, 29
S_T0, S_T1 = 30, 31
S_WQ, S_WK, S_WV, S_WO = 32, 36, 40, 44
S_MA, S_MB = 32, 40
S_WBASE = 48
S_KXS, S_VXS, S_KMS, S_VMS = 49, 50, 51, 52
S_MM0 = 53
S_TM = 54
S_HIST = 56
S_T2, S_T3 = 58, 59
S_MEM0 = 60
S_TCH, S_KXM, S_VXM, S_MTG = 64, 65, 66, 67
S_C1, S_C2, S_IOF = 68, 69, 70
S_XVO = 71
S_SEL = 72
S_ST = 80

def f32(x): return struct.unpack('<I', struct.pack('<f', x))[0]

LDS_DOUBLES = [('q', 1), ('k', 3), ('q', 5), ('k', 7), ('v', 8), ('o', 0, 1), ('o', 1, 3), ('z',)]
def all_doubles():
    d = []
    for X in 'qkv':
        for ks in range(9): d.append((X, ks))
    for pp in range(2):
        for k in range(4): d.append(('o', pp, k))
    d.append(('z',))
    return d
def ops_of(d):
    if d[0] in 'qkv': return [(d[0], 0, d[1]), (d[0], 1, d[1])]
    if d[0] == 'o': return [('o', 2 * d[1], d[2]), ('o', 2 * d[1] + 1, d[2])]
    return [('z', 0), ('z', 1)]
REG_DOUBLES = [d for d in all_doubles() if d not in LDS_DOUBLES]
ORDER = REG_DOUBLES + LDS_DOUBLES
WREG = {}; WLDS = {}
for i, d in enumerate(REG_DOUBLES):
    for j, op in enumerate(ops_of(d)):
        n = 2 * i + j
        WREG[op] = ('a', 8 * n) if n < 32 else ('v', 64 + 8 * (n - 32))
for i, d in enumerate(LDS_DOUBLES):
    slot = (len(REG_DOUBLES) + i) % 8
    for j, op in enumerate(ops_of(d)):
        WLDS[op] = slot * 4096 + j * 2048
def wreg(op):
    f, b = WREG[op]; return vr(b, 8, f)
WS = f's[{S_WS}:{S_WS+3}]'

class Chain:
    def __init__(self, a, debug=False, stamps=False, nsteps=64, opt=None):
        self.a = a; self.debug = debug; self.stamps = stamps; self.nsteps = nsteps
        self.opt = opt or {}
        self.stn = {}
    def stamp(self, name):
        if not self.stamps or name not in self.stamps: return
        i = self.stamps.index(name)
        self.a(f's_mem{"real" if self.opt.get("rt") else ""}time s[{S_ST + 2*i}:{S_ST + 2*i + 1}]')
    def setup(self):
        a = self.a
        for srd, ka in ((S_WQ, KA_WQ), (S_WK, KA_WK), (S_WV, KA_WV), (S_WO, KA_WO), (S_MEM0, KA_MEM0)):
            a(f's_load_dwordx2 s[{srd}:{srd+1}], s[0:1], {ka}')
        a('s_waitcnt lgkmcnt(0)')
        for srd in (S_WQ, S_WK, S_WV, S_WO):
            a(f's_mov_b32 s{srd+2}, 4718592\ns_mov_b32 s{srd+3}, 0x00020000')
        a(f's_mov_b32 s{S_MEM0+2}, 9216\ns_mov_b32 s{S_MEM0+3}, 0x00020000')
        L, N, G, T0, T1, T2, T3 = 12, 13, 14, 15, 16, 17, 18
        a(f'''
        v_and_b32 v{L}, 63, v0
        v_and_b32 v{N}, 15, v{L}
        v_lshrrev_b32 v{G}, 4, v{L}
        s_lshl_b32 s{S_WBASE}, s{S_W}, 15
        s_mul_i32 s{S_T2}, s{S_W}, 4096
        s_add_u32 s{S_MM0}, s{S_T2}, {L_M}
        s_add_u32 s{S_MLD}, s{S_T2}, {WS_MBUF - L_M}
        s_add_u32 s{S_MTG}, s{S_T2}, {WS_MBUF}
        v_lshlrev_b32 v{T0}, 4, v{L}
        v_add_u32 v{VWL}, s{S_WBASE}, v{T0}
        v_add_u32 v{VB}, {L_M}, v{T0}
        v_mov_b32 v{T0}, 0x88888888
        v_mov_b32 v{T1}, 0xdddddddd
        v_cmp_gt_u32 vcc, 8, v{N}
        v_cndmask_b32 v{IDX}, v{T1}, v{T0}, vcc
        ''')
        a(f'''
        s_mul_i32 s{S_T0}, s{S_W}, {XS}
        s_add_u32 s{S_T1}, s{S_T0}, {L_X}
        v_lshlrev_b32 v{T0}, 3, v{N}
        v_lshrrev_b32 v{T1}, 1, v{G}
        v_lshl_add_u32 v{T1}, v{T1}, 7, v{T0}
        v_and_b32 v{T2}, 1, v{G}
        v_lshl_add_u32 v{T1}, v{T2}, 2, v{T1}
        v_add_u32 v{VXW}, s{S_T1}, v{T1}
        ''')
        a(f'''
        v_bfe_u32 v{T0}, v{L}, 3, 1
        v_lshl_add_u32 v{T0}, v{G}, 2, v{T0}
        v_lshlrev_b32 v{T0}, 3, v{T0}
        v_bfe_u32 v{T1}, v{L}, 2, 1
        v_lshl_add_u32 v{T0}, v{T1}, 7, v{T0}
        v_and_b32 v{T1}, 1, v{L}
        v_mul_u32_u24 v{T1}, 320, v{T1}
        v_add_u32 v{T1}, v{T1}, v{T0}
        v_add_u32 v{VTR}, {L_X}, v{T1}
        v_bfe_u32 v{T2}, v{L}, 1, 1
        v_mul_u32_u24 v{T1}, 320, v{T2}
        v_add_u32 v{T1}, v{T1}, v{T0}
        v_add_u32 v{VTRK}, {L_X + 576}, v{T1}
        v_mul_u32_u24 v{T1}, {2*XS}, v{T2}
        v_add_u32 v{VTRZ}, v{T1}, v{VTR}
        ''')
        a(f'''
        s_lshl_b32 s{S_T0}, s{S_W}, 11
        s_add_u32 s{S_VXM}, s{S_T0}, {L_VX}
        s_add_u32 s{S_KXM}, s{S_T0}, {L_KX}
        s_add_u32 s{S_XVO}, s{S_T0}, {L_VX - L_M}
        v_lshl_add_u32 v{VVX}, v{L}, 2, s{S_VXM}
        v_min_u32 v{T0}, 39, v{L}
        v_lshlrev_b32 v{T0}, 7, v{T0}
        v_add_u32 v{VMT}, 120, v{T0}
        ''')
        a(f'''
        s_mul_i32 s{S_T2}, s{S_H}, {PSTRIDE}
        s_mul_i32 s{S_T1}, s{S_W}, 2304
        s_add_u32 s{S_T2}, s{S_T2}, s{S_T1}
        v_lshrrev_b32 v{T0}, 1, v{G}
        v_lshlrev_b32 v{T0}, 8, v{T0}
        v_lshl_add_u32 v{T0}, v{N}, 4, v{T0}
        v_and_b32 v{T1}, 1, v{G}
        v_lshl_add_u32 v{T0}, v{T1}, 3, v{T0}
        v_add_u32 v{VPST}, s{S_T2}, v{T0}
        ''')
        a(f'''
        s_lshl_b32 s{S_T0}, s{S_W}, 5
        s_add_u32 s{S_T0}, s{S_T0}, s{S_H}
        s_cmp_lt_u32 s{S_T0}, 72
        s_cselect_b32 s{S_HAS}, 1, 0
        s_lshl_b32 s{S_T0}, s{S_T0}, 7
        s_add_u32 s{S_MST}, s{S_T0}, {WS_MBUF}
        s_sub_u32 s{S_MST}, s{S_MST}, s{S_T2}
        s_add_u32 s{S_HIST}, s{S_MST}, {WS_MHIST + 9216 - WS_MBUF}
        s_mov_b32 s{S_T1}, {PSTRIDE}
        v_lshrrev_b32 v{T0}, 3, v{L}
        v_mul_lo_u32 v{T0}, v{T0}, s{S_T1}
        v_and_b32 v{T1}, 7, v{L}
        v_lshl_add_u32 v{T0}, v{T1}, 4, v{T0}
        v_add_u32 v{VRD}, s{S_T0}, v{T0}
        ''')
        for i in range(4):
            a(f's_mov_b32 s{S_RD+i}, {WS_PART + 8*i*PSTRIDE}')
        a(f'''
        s_mov_b32 s{S_PART}, {WS_PART}
        s_mov_b32 s{S_MSK}, 0x00ff00ff
        s_mov_b32 s{S_MSK+1}, 0
        s_mov_b32 s{S_LO}, -1
        s_mov_b32 s{S_LO+1}, 0
        s_mov_b32 s{S_C}, {hex(f32(128 ** -0.5 * 1.4426950408889634))}
        s_lshl_b32 s{S_T0}, s{S_H}, 13
        s_lshl_b32 s{S_T1}, s{S_W}, 11
        s_add_u32 s{S_T1}, s{S_T1}, s{S_T0}
        s_add_u32 s{S_KXS}, s{S_T1}, {WS_KP - L_M}
        s_add_u32 s{S_VXS}, s{S_T1}, {WS_VP - L_M}
        s_and_b32 s{S_T1}, s{S_W}, 1
        s_lshl_b32 s{S_T1}, s{S_T1}, 12
        s_add_u32 s{S_T0}, s{S_T0}, s{S_T1}
        s_lshr_b32 s{S_T1}, s{S_W}, 1
        s_mul_i32 s{S_T1}, s{S_T1}, {WS_VP - WS_KP}
        s_add_u32 s{S_T0}, s{S_T0}, s{S_T1}
        s_add_u32 s{S_TCH}, s{S_T0}, {WS_KP - 8*L_M}
        s_lshl_b32 s{S_T0}, s{S_H}, 2
        s_add_u32 s{S_T0}, s{S_T0}, s{S_W}
        s_lshl_b32 s{S_T1}, s{S_T0}, 10
        s_add_u32 s{S_VMS}, s{S_T1}, {WS_VM - L_M}
        s_lshl_b32 s{S_T1}, s{S_T0}, 9
        s_add_u32 s{S_KMS}, s{S_T1}, {WS_KM}
        s_sub_u32 s{S_KMS}, s{S_KMS}, s{S_T2}
        ''')
        a(f'''
        v_and_b32 v{T0}, 1, v{N}
        v_lshlrev_b32 v{T0}, 4, v{T0}
        v_mov_b32 v{T1}, 0x3f80
        v_lshlrev_b32 v{VBD}, v{T0}, v{T1}
        ''')
        for jj in range(4):
            m = (3 << (2 * jj)) * 0x00010001
            a(f's_mov_b32 s{S_SEL+2*jj}, {hex(m)}\ns_mov_b32 s{S_SEL+2*jj+1}, {hex(m)}')
        for jj in range(4):
            a(f'v_mov_b32 v{24+jj}, 0x3f003f00\nv_mov_b32 v{28+jj}, 0')
        a(f'''
        ds_write_b128 v{VB}, v[24:27] offset:{L_CHALF - L_M}
        ds_write_b128 v{VB}, v[28:31] offset:{L_CZERO - L_M}
        ''')
        for pi in range(4):
            a(f'buffer_store_dwordx2 v[28:29], v{VPST}, {WS}, s{S_PART} offen offset:{512*pi} sc1')
        lab = a.uid('Lni')
        a(f'''
        s_mov_b64 exec, s[{S_LO}:{S_LO+1}]
        buffer_store_dwordx2 v[28:29], v{VPST}, {WS}, s{S_PART} offen offset:2048 sc1
        s_mov_b64 exec, -1
        s_cmp_eq_u32 s{S_HAS}, 0
        s_cbranch_scc1 {lab}
        s_mov_b64 exec, s[{S_MSK}:{S_MSK+1}]
        buffer_store_dwordx2 v[28:29], v{VPST}, {WS}, s{S_MST} offen sc1
        s_mov_b64 exec, -1
        {lab}:
        s_waitcnt vmcnt(0) lgkmcnt(0)
        s_barrier
        ''')
        lab = a.uid('Lsg')
        a(f'''
        s_cmp_eq_u32 s{S_W}, 0
        s_cbranch_scc0 {lab}
        s_mov_b64 exec, 1
        v_mov_b32 v20, 1
        buffer_atomic_add v20, off, s[{S_DBG}:{S_DBG+3}], 0 offset:4
        s_mov_b64 exec, -1
        {lab}:
        ''')
        a.reset_counters()
    def load_weights(self):
        a = self.a
        L, N, G = 12, 13, 14
        A_, CC, T0, T1 = 15, 16, 17, 18
        VQ, VO, VZ, RQ, RO, RZ, RV = 20, 21, 22, 23, 24, 25, 26
        TMP = 32
        a(f'''
        v_lshrrev_b32 v{A_}, 2, v{N}
        v_and_b32 v{CC}, 3, v{L}
        v_lshrrev_b32 v{T0}, 2, v{L}
        v_lshlrev_b32 v{T0}, 13, v{T0}
        v_lshl_add_u32 v{VQ}, v{CC}, 4, v{T0}
        s_mov_b32 s{S_T0}, 1152
        v_lshrrev_b32 v{T0}, 3, v{L}
        v_mul_lo_u32 v{T0}, v{T0}, s{S_T0}
        v_and_b32 v{T1}, 7, v{L}
        v_lshl_add_u32 v{VO}, v{T1}, 4, v{T0}
        v_lshrrev_b32 v{T0}, 1, v{L}
        v_mul_lo_u32 v{T0}, v{T0}, s{S_T0}
        v_and_b32 v{T1}, 1, v{L}
        v_lshl_add_u32 v{VZ}, v{T1}, 4, v{T0}
        ''')
        a(f'''
        v_lshrrev_b32 v{T0}, 1, v{G}
        v_lshlrev_b32 v{T0}, 4, v{T0}
        v_and_b32 v{T1}, 1, v{G}
        v_lshl_add_u32 v{T0}, v{T1}, 2, v{T0}
        v_and_b32 v{T1}, 1, v{A_}
        v_lshl_add_u32 v{T0}, v{T1}, 3, v{T0}
        v_lshrrev_b32 v{T1}, 1, v{A_}
        v_add_u32 v{T0}, v{T0}, v{T1}
        v_lshlrev_b32 v{T0}, 6, v{T0}
        v_lshl_add_u32 v{T0}, v{CC}, 3, v{T0}
        v_add_u32 v{RV}, s{S_WBASE}, v{T0}
        ''')
        a(f'''
        v_lshl_add_u32 v{T0}, v{G}, 2, v{T1}
        v_lshlrev_b32 v{T0}, 6, v{T0}
        v_and_b32 v{T1}, 1, v{A_}
        v_lshl_add_u32 v{T0}, v{T1}, 5, v{T0}
        v_lshl_add_u32 v{T0}, v{CC}, 3, v{T0}
        v_add_u32 v{RQ}, s{S_WBASE}, v{T0}
        ''')
        a(f'''
        v_lshrrev_b32 v{T0}, 1, v{A_}
        v_lshlrev_b32 v{T0}, 4, v{T0}
        v_lshl_add_u32 v{T0}, v{G}, 1, v{T0}
        v_and_b32 v{T1}, 1, v{A_}
        v_lshlrev_b32 v{RO}, 7, v{T0}
        v_lshl_add_u32 v{RO}, v{T1}, 5, v{RO}
        v_lshl_add_u32 v{RO}, v{CC}, 3, v{RO}
        v_add_u32 v{RO}, s{S_WBASE}, v{RO}
        v_lshl_add_u32 v{T0}, v{T1}, 6, v{T0}
        v_lshlrev_b32 v{T0}, 5, v{T0}
        v_lshl_add_u32 v{T0}, v{CC}, 3, v{T0}
        v_add_u32 v{RZ}, s{S_WBASE}, v{T0}
        ''')
        a(f'''
        s_lshl_b32 s{S_T2}, s{S_H}, 8
        s_lshl_b32 s{S_T0}, s{S_W}, 6
        s_add_u32 s{S_T2}, s{S_T2}, s{S_T0}
        s_mul_i32 s{S_T3}, s{S_H}, {128*1152}
        s_mul_i32 s{S_T0}, s{S_W}, 288
        s_add_u32 s{S_T3}, s{S_T3}, s{S_T0}
        ''')
        def issue(i):
            d = ORDER[i]; slot = i % 8
            for x in range(4):
                a(f's_add_u32 m0, s{S_WBASE}, {slot*4096 + x*1024}')
                if d[0] in 'qkv':
                    srd = {'q': S_WQ, 'k': S_WK, 'v': S_WV}[d[0]]; v = VQ
                    a(f's_add_u32 s{S_T0}, s{S_T2}, {(64*d[1] + 16*x) * 8192}')
                elif d[0] == 'o':
                    srd = S_WO; v = VO
                    a(f's_add_u32 s{S_T0}, s{S_T3}, {(32*d[2] + 8*x) * 1152 + 128*d[1]}')
                else:
                    srd = S_WO; v = VZ
                    a(f's_add_u32 s{S_T0}, s{S_T3}, {32*x*1152 + 256}')
                a(f'buffer_load_dwordx4 v{v}, s[{srd}:{srd+3}], s{S_T0} offen lds', tag=('w', i))
        for i in range(8): issue(i)
        for i, d in enumerate(ORDER):
            slot = i % 8
            a.wait_vm(('w', i))
            for j, op in enumerate(ops_of(d)):
                if op in WREG: f, b = WREG[op]
                else: f, b = 'v', TMP + 8 * j
                for al in range(2):
                    for y in range(2):
                        if d[0] in 'qkv': v = RV; off = (32*al + 2*y) * 64 + 32*j
                        elif d[0] == 'o': v = RO; off = (8*al + y) * 128 + 64*j
                        else: v = RZ; off = (32*j + 8*al + y) * 32
                        a(f'ds_read_b64_tr_b16 {vr(b + 4*al + 2*y, 2, f)}, v{v} offset:{slot*4096 + off}')
            a.wait_lgkm()
            if d in LDS_DOUBLES:
                for k in range(4):
                    a(f'ds_write_b128 v{VWL}, {vr(TMP + 4*k, 4)} offset:{slot*4096 + k*1024}')
                a.wait_lgkm()
            if i + 8 < len(ORDER): issue(i + 8)
    def touch(self):
        T = Q(12) + 3
        return [f'v_lshlrev_b32 v{T}, 3, v{VB}', f's_mov_b32 m0, {L_X + 4672}', f's_mov_b64 exec, s[{S_LO}:{S_LO+1}]',
                f'buffer_load_dword v{T}, {WS}, s{S_TCH} offen sc1 lds', 's_mov_b64 exec, -1', f's_add_u32 s{S_TCH}, s{S_TCH}, {32*8192}']
    def kx_dma(self):
        return [f's_mov_b32 m0, s{S_KXM}', f's_nop 0', f'buffer_load_dwordx4 v{VB}, {WS}, s{S_KXS} offen sc1 lds',
                f'buffer_load_dwordx4 v{VB}, {WS}, s{S_KXS} offen offset:1024 sc1 lds', f's_add_u32 s{S_KXS}, s{S_KXS}, {32*8192}']
    def prep_p1(self, par):
        a = self.a
        for q, op in ((6, ('q', 0, 1)), (8, ('q', 1, 1))):
            for h in range(2): a(f'ds_read_b128 {q4(q+h)}, v{VWL} offset:{WLDS[op] + 1024*h}')
        for r in range(Q(2), Q(6)): a(f'v_mov_b32 v{r}, 0')
        for r in range(Q(11), Q(12)): a(f'v_mov_b32 v{r}, 0')
        a(f'v_mov_b32 v{Q(12)}, {-1 if par else 0}')
        a(f'v_add_u32 v{Q(10)}, s{S_XVO}, v{VB}')
    def first_m(self):
        a = self.a
        L, N, G = 12, 13, 14
        lj = a.uid('Lfj'); lp = a.uid('Lfp')
        for x in self.touch() + self.touch(): a(x)
        a(f"""
        s_cmp_ge_u32 s{S_W}, 2
        s_cbranch_scc1 {lj}
        v_and_b32 v15, 7, v{N}
        s_mov_b32 s{S_T0}, 1152
        v_mul_lo_u32 v15, v15, s{S_T0}
        v_lshrrev_b32 v16, 3, v{L}
        v_lshl_add_u32 v15, v16, 4, v15
        s_mul_i32 s{S_T0}, s{S_W}, 512
        s_mov_b32 m0, s{S_MM0}
        s_nop 0
        """)
        a(f'buffer_load_dwordx4 v15, s[{S_MEM0}:{S_MEM0+3}], s{S_T0} offen lds')
        for j in range(1, 5):
            a(f's_add_u32 m0, s{S_MM0}, {1024*j}\ns_add_u32 s{S_T0}, s{S_T0}, 128')
            a(f'buffer_load_dwordx4 v15, s[{S_MEM0}:{S_MEM0+3}], s{S_T0} offen lds')
        a(f"""
        s_mov_b32 s{S_SPIN}, 0
        {lp}:
        buffer_load_dword v15, off, s[{S_DBG}:{S_DBG+3}], 0 offset:4 sc1
        s_add_u32 s{S_SPIN}, s{S_SPIN}, 1
        s_cmp_gt_u32 s{S_SPIN}, 0x40000
        s_cbranch_scc1 L_chain_fail
        s_waitcnt vmcnt(0)
        v_cmp_gt_u32 vcc, {self.opt.get('solo', 32)}, v15
        s_cbranch_vccnz {lp}
        {lj}:
        """)
        self.prep_p1(0)
        for x in self.kx_dma(): a(x)
        a(f"""
        s_mov_b32 s{S_STEP}, 0
        s_mov_b32 s{S_C1}, 0
        s_mov_b32 s{S_C2}, 0
        s_mov_b32 s{S_IOF}, 0xf0000000
        s_waitcnt vmcnt(0) lgkmcnt(0)
        """)
        a.reset_counters()
    def step(self, stf, par):
        a = self.a
        sfx = stf.replace(' ', '') + str(par)
        otag = 1 - par
        def rdM(q, ks): a(f'ds_read_b128 {q4(q)}, v{VB} offset:{1024*ks}', tag=('q', q))
        def rdC(q, off): a(f'ds_read_b128 {q4(q)}, v{VB} offset:{off - L_M}', tag=('q', q))
        def zero(q): rdC(q, L_CZERO)
        def rdW1(q, op, h): a(f'ds_read_b128 {q4(q+h)}, v{VWL} offset:{WLDS[op] + 1024*h}', tag=('q', q))
        def rdW(q, op): rdW1(q, op, 0); rdW1(q, op, 1)
        def rdKX(q, t, k): rdC(q, L_KX + (2*k + t) * 1024)
        def rdTR1(q, v, off, y): a(f'ds_read_b64_tr_b16 {vr(Q(q) + 2*y, 2)}, v{v} offset:{off + 16*y}', tag=('q', q))
        def rdTR(q, v, off): rdTR1(q, v, off, 0); rdTR1(q, v, off, 1)
        def wq(q): a.wait_lgkm(('q', q))
        def smf(acc, A, B): a(f'v_smfmac_f32_16x16x64_bf16 {q4(acc)}, {q4(A)}, {B}, v{IDX}')
        def mfma(acc, A, B, first): a(f'v_mfma_f32_16x16x32_bf16 {q4(acc)}, {q4(A)}, {q4(B)}, {"0" if first else q4(acc)}')
        def pack(q): return [f'v_cvt_pk_bf16_f32 v{Q(q)}, v{Q(q)}, v{Q(q)+1}', f'v_cvt_pk_bf16_f32 v{Q(q)+1}, v{Q(q)+2}, v{Q(q)+3}']
        def settag(r): return f'v_or_b32 v{r}, 1, v{r}' if otag else f'v_and_b32 v{r}, -2, v{r}'
        def do(x):
            if x is not None: x() if callable(x) else a(x)
        def run(fl, n):
            for _ in range(n):
                if fl: do(fl.pop(0))
        def halfsum(x, y):
            return ([f'v_permlane32_swap_b32 v{Q(x)+r}, v{Q(y)+r}' for r in range(4)] +
                    [f'v_add_f32 v{Q(x)+r}, v{Q(x)+r}, v{Q(y)+r}' for r in range(4)] + pack(x))
        def rdTRk(q, v, k): rdTR1(q, v, XS * k, 0); rdTR1(q, v, XS * k, 1)
        def chkop(A): return f'v_bitop3_b32 v{CHK}, v{CHK}, v{Q(A)}, v{Q(A)+2} bitop3:{"0x80" if par else "0xfe"}'
        a(f'L_b1{sfx}:')
        a('s_barrier   ; B1')
        self.stamp('B1')
        CHK = Q(12)
        rdM(0, 0); rdM(1, 1)
        a(f'ds_read_b128 {q4(10)}, v{Q(10)}', tag='xv')
        a(f's_mov_b32 m0, s{S_VXM}')
        gaps = {i: [] for i in range(40)}
        gaps[2] += [lambda: a.wait_lgkm('xv'), f'buffer_load_dwordx4 v{VB}, {WS}, s{S_VXS} offen sc1 lds']
        gaps[9] += [f'buffer_load_dwordx4 v{VB}, {WS}, s{S_VXS} offen offset:1024 sc1 lds', f's_mov_b32 m0, {L_X + 4672}']
        gaps[13] += [f'buffer_store_dwordx4 {q4(10)}, v{VB}, {WS}, s{S_IOF} offen sc1']
        gaps[17] += [f'v_lshlrev_b32 v{Q(12)+3}, 3, v{VB}']
        gaps[18] += [f's_mov_b64 exec, s[{S_LO}:{S_LO+1}]\nbuffer_load_dword v{Q(12)+3}, {WS}, s{S_TCH} offen sc1 lds\ns_mov_b64 exec, -1']
        for j, g in enumerate((21, 22, 25, 26)): gaps[g] += [f'v_mov_b32 v{Q(10)+j}, 0']
        gaps[29] += ['s_waitcnt vmcnt(4)']
        gaps[32] += [lambda: rdKX(6, 0, 0)]; gaps[33] += [lambda: rdKX(7, 1, 0)]; gaps[34] += [lambda: rdKX(8, 0, 1)]
        nxtw = {1: 3, 3: 5, 5: 7}
        for ks in range(9):
            A = ks % 2
            wq(A)
            for j, (X, t) in enumerate((('q', 0), ('q', 1), ('k', 0), ('k', 1))):
                i = 4 * ks + j
                l = (X, t, ks) in WLDS
                ws = 6 + 2 * t
                if l: wq(ws)
                smf(2 + j, A, q8(ws) if l else wreg((X, t, ks)))
                if l and ks in nxtw:
                    n = nxtw[ks]; Y = 'q' if ('q', t, n) in WLDS else 'k'
                    gaps[i + 1 + t] += [lambda ws=ws, op=(Y, t, n): rdW1(ws, op, 0)]
                    gaps[i + 2 + t] += [lambda ws=ws, op=(Y, t, n): rdW1(ws, op, 1)]
                if j == 3: rdM(A, (ks + 2) % 9 if ks < 7 else ks - 7)
                for x in gaps[i]: do(x)
                if j == 0 and ks >= 2: a(chkop(A))
        self.stamp('P1')
        def V(ks, A, nxt, mid=(), end=()):
            wq(A)
            for t in range(2):
                l = ('v', t, ks) in WLDS
                if l: wq(6 + 2 * t)
                smf(10 + t, A, q8(6 + 2 * t) if l else wreg(('v', t, ks)))
                if t == 0:
                    for x in mid: do(x)
            if nxt is not None: rdM(A, nxt)
            for x in end: do(x)
        chk = [f's_cbranch_vccz L_ok{sfx}'] + ([f's_cmp_eq_u32 s{S_STEP}, 0', f's_cbranch_scc1 L_ok{sfx}'] if par == 0 else []) + [f's_branch L_redo{sfx}', f'L_ok{sfx}:']
        if self.opt.get('noexch'): chk = []
        hq, hk = halfsum(2, 3), halfsum(4, 5)
        V(0, 1, None, mid=[lambda: rdKX(9, 1, 1), chkop(1)], end=[lambda: rdM(1, 2)] + hq[0:4])
        V(1, 0, None, mid=[chkop(0)] + hq[4:8], end=[lambda: rdM(0, 3)] + hq[8:10] + hk[0:2])
        V(2, 1, 4, mid=[lambda: a(f'ds_write2_b32 v{VXW}, v{Q(2)}, v{Q(2)+1} offset0:0 offset1:80', tag='x')] + hk[2:4],
          end=hk[4:10])
        V(3, 0, None, mid=[lambda: a(f'ds_write2_b32 v{VXW}, v{Q(4)}, v{Q(4)+1} offset0:144 offset1:224', tag='x'),
                           f'v_and_b32 v{CHK}, 1, v{CHK}'], end=[f'v_cmp_ne_u32 vcc, {par}, v{CHK}'])
        for x in chk: a(x)
        a(f'buffer_store_dwordx2 {vr(Q(4), 2)}, v{VPST}, {WS}, s{S_KMS} offen sc1')
        a(f's_add_u32 s{S_KMS}, s{S_KMS}, {32*2048}\ns_add_u32 s{S_VXS}, s{S_VXS}, {32*8192}\ns_add_u32 s{S_TCH}, s{S_TCH}, {32*8192}')
        a.wait_lgkm('x')
        a('s_barrier   ; B2')
        self.stamp('B2')
        ring = [6, 7, 8, 9]; QT = [2, 3, 5, 4]
        stream = []
        for k in range(4): stream += [('x', 0, k), ('x', 1, k)]
        for k in range(4): stream += [('m', k)]
        def rdop(i):
            q = ring[i % 4]; o = stream[i]
            if o[0] == 'x': rdKX(q, o[1], o[2])
            else: rdTRk(q, VTRK, o[1])
        rdTRk(QT[0], VTR, 0); rdTRk(QT[1], VTR, 1)
        V(4, 1, None, mid=[lambda: rdTRk(QT[2], VTR, 2)], end=[lambda: rdTRk(QT[3], VTR, 3)])
        MX, TT, NM = Q(4), Q(4) + 1, Q(4) + 2
        S = [Q(0) + r for r in range(4)] + [Q(1) + r for r in range(4)] + [Q(12) + r for r in range(4)]
        for i, o in enumerate(stream):
            k = o[-1]
            wq(ring[i % 4]); wq(QT[k])
            acc = o[1] if o[0] == 'x' else 12
            mfma(acc, ring[i % 4], QT[k], k == 0)
            if i + 4 < 12: rdop(i + 4)
            if i == 8: rdM(2, 5)
            if i == 9: rdM(3, 6)
            if i == 10: zero(5)
            if i == 11: rdW1(6, ('v', 0, 8), 0)
        self.stamp('S')
        V(5, 2, 7, mid=[lambda: rdW1(6, ('v', 0, 8), 1), lambda: rdW1(8, ('v', 1, 8), 0), f'v_max3_f32 v{MX}, v{S[0]}, v{S[1]}, v{S[2]}'],
          end=[lambda: rdW1(8, ('v', 1, 8), 1), f'v_max3_f32 v{MX}, v{MX}, v{S[3]}, v{S[4]}',
               f'v_max3_f32 v{MX}, v{MX}, v{S[5]}, v{S[6]}', f'v_max3_f32 v{TT}, v{S[9]}, v{S[10]}, v{S[11]}',
               f'v_max3_f32 v{MX}, v{MX}, v{S[7]}, v{S[8]}', f'v_max_f32 v{MX}, v{MX}, v{TT}', f'v_max_f32 v{TT}, v{MX}, v{TT}'])
        wq(3); smf(10, 3, wreg(('v', 0, 6)))
        a(f's_nop 0\nv_permlane16_swap_b32 v{MX}, v{TT}\nv_max_f32 v{MX}, v{MX}, v{TT}\nv_max_f32 v{TT}, v{MX}, v{TT}')
        smf(11, 3, wreg(('v', 1, 6))); rdM(3, 8)
        a(f'v_permlane32_swap_b32 v{MX}, v{TT}\nv_max_f32 v{MX}, v{MX}, v{TT}\nv_mul_f32_e64 v{NM}, -s{S_C}, v{MX}')
        f = lambda r: f'v_fma_f32 v{r}, v{r}, s{S_C}, v{NM}'
        e = lambda r: f'v_exp_f32 v{r}, v{r}'
        V(7, 2, None, mid=[f(r) for r in S[0:4]], end=[lambda: rdC(2, L_CHALF), 's_waitcnt vmcnt(3)'] + [f(r) for r in S[4:12]])
        def b1(y0):
            for y in range(y0, y0 + 2): a(f'ds_read2st64_b32 {vr(Q(6) + 2*y, 2)}, v{VVX} offset0:{2*y} offset1:{2*y + 1}', tag=('q', 6))
        V(8, 3, None, mid=[lambda: b1(0), e(S[0])], end=[lambda: b1(2), lambda: zero(3), lambda: zero(4)] + [e(r) for r in S[1:8]])
        a(f"""
        v_cvt_pk_bf16_f32 v{Q(0)}, v{Q(0)}, v{Q(0)+1}
        v_cvt_pk_bf16_f32 v{Q(0)+1}, v{Q(0)+2}, v{Q(0)+3}
        v_cvt_pk_bf16_f32 v{Q(0)+2}, v{Q(1)}, v{Q(1)+1}
        v_cvt_pk_bf16_f32 v{Q(0)+3}, v{Q(1)+2}, v{Q(1)+3}
        v_exp_f32 v{S[8]}, v{S[8]}
        v_exp_f32 v{S[9]}, v{S[9]}
        """)
        wq(3)
        mfma(1, 0, 2, True)
        a(e(S[10]))
        mfma(1, 0, 2, False)
        a(e(S[11]))
        for r in range(2): a(f'v_cvt_pk_bf16_f32 v{Q(8 + r//2) + r%2}, v{Q(10)+r}, v{Q(11)+r}')
        smf(5, 0, q8(6))
        a(f'v_cvt_pk_bf16_f32 v{Q(3)}, v{S[8]}, v{S[9]}\nv_cvt_pk_bf16_f32 v{Q(3)+2}, v{S[10]}, v{S[11]}')
        for r in range(2, 4): a(f'v_cvt_pk_bf16_f32 v{Q(8 + r//2) + r%2}, v{Q(10)+r}, v{Q(11)+r}')
        mfma(1, 3, 2, False)
        a(f'ds_write2st64_b32 v{VVX}, v{Q(8)}, v{Q(8)+1} offset0:0 offset1:1', tag='xvw')
        smf(5, 3, q8(8))
        self.stamp('PV')
        a(f'ds_write2st64_b32 v{VVX}, v{Q(9)}, v{Q(9)+1} offset0:2 offset1:3', tag='xvw')
        rdW(2, ('z', 0)); rdW(10, ('z', 1)); zero(12)
        for r in range(4): a(f'v_rcp_f32 v{Q(1)+r}, v{Q(1)+r}')
        for r in range(4): a(f'v_mul_f32 v{Q(5)+r}, v{Q(5)+r}, v{Q(1)+r}')
        for x in pack(5): a(x)
        a(f'ds_write2_b32 v{VXW}, v{Q(5)}, v{Q(5)+1} offset0:0 offset1:80', tag='x')
        if par == 1: a(f's_cmp_eq_u32 s{S_STEP}, {self.nsteps - 1}')
        for r in range(4): a(f'v_mov_b32 v{Q(5)+r}, 0')
        a.wait_lgkm('x')
        a('s_barrier   ; B4')
        self.stamp('B4')
        if par == 1: a(f's_cbranch_scc1 L_chain_last{stf.replace(" ", "")}')
        rdTRk(6, VTR, 0); rdTRk(0, VTRZ, 0); rdTRk(1, VTRZ, 1)
        def post(acc, pi):
            return pack(acc) + [settag(Q(acc)), f'buffer_store_dwordx2 {vr(Q(acc), 2)}, v{VPST}, {WS}, s{S_PART} offen offset:{512*pi} {stf}']
        Z = Q(12)
        zp = [f'v_permlane32_swap_b32 v{Z}, v{Z+2}', f'v_permlane32_swap_b32 v{Z+1}, v{Z+3}',
              f'v_add_f32 v{Z}, v{Z}, v{Z+2}', f'v_add_f32 v{Z+1}, v{Z+1}, v{Z+3}',
              f'v_cvt_pk_bf16_f32 v{Z}, v{Z}, v{Z+1}', f'v_mov_b32 v{Z+1}, v{Z}',
              f'v_permlane32_swap_b32 v{Z}, v{Z+1}', settag(Z),
              f's_mov_b64 exec, s[{S_LO}:{S_LO+1}]\nbuffer_store_dwordx2 {vr(Z, 2)}, v{VPST}, {WS}, s{S_PART} offen offset:2048 {stf}\ns_mov_b64 exec, -1']
        accs = [4, 5, 0, 1]
        p0, p1, p2 = post(4, 0), post(5, 1), post(0, 2)
        W_ = lambda pi, k: wreg(('o', pi, k))
        seq = [(4, 6, W_(0, 0)), (5, 6, W_(1, 0)), (12, 0, q8(2)), (12, 1, q8(10)),
               (4, 8, W_(0, 2)), (4, 9, W_(0, 3)), (4, 7, q8(2)),
               (5, 8, W_(1, 2)), (5, 9, W_(1, 3)), (5, 7, q8(10)),
               (0, 6, W_(2, 0)), (0, 7, W_(2, 1)), (0, 8, W_(2, 2)), (0, 9, q8(2)),
               (1, 6, W_(3, 0)), (1, 7, W_(3, 1)), (1, 8, W_(3, 2)), (1, 9, q8(10))]
        need = {0: [6], 2: [0], 3: [1], 4: [8], 5: [9], 6: [7, 2], 9: [10], 10: [0], 13: [2], 14: [1], 17: [10]}
        g = {0: [lambda: rdTRk(8, VTR, 2)], 1: [lambda: rdTRk(9, VTR, 3)], 2: [lambda: rdTRk(7, VTR, 1), lambda: rdW1(2, ('o', 0, 1), 0)],
             3: [lambda: rdW1(2, ('o', 0, 1), 1)], 4: [lambda: rdW(10, ('o', 1, 1))], 5: [lambda: zero(0), zp[0]], 6: [lambda: zero(1), zp[1]],
             7: [lambda: rdW1(2, ('o', 2, 3), 0)] + zp[2:4], 8: [lambda: rdW1(2, ('o', 2, 3), 1)] + zp[4:6], 9: p0[0:2],
             10: [lambda: rdW(10, ('o', 3, 3)), zp[6]], 11: [p0[2], zp[7]], 12: [p0[3], zp[8], p1[0]], 13: p1[1:3], 14: [p1[3]],
             16: [p2[0]], 17: p2[1:]}
        for i, (acc, A, B) in enumerate(seq):
            for q in need.get(i, []): wq(q)
            smf(acc, A, B)
            for x in g.get(i, []): do(x)
        a(f's_mov_b32 s{S_IOF}, s{S_VMS}\ns_add_u32 s{S_VMS}, s{S_VMS}, {32*4096}\ns_mov_b32 s{S_SPIN}, 0\ns_cmp_eq_u32 s{S_HAS}, 0')
        for x in post(1, 3): a(x)
        self.stamp('Wo')
        def delay(n):
            while n > 0:
                a(f's_nop {min(n, 16) - 1}'); n -= 16
        tb = '0x2a' if otag else '0xa8'
        if self.opt.get('noexch'):
            for x in self.kx_dma(): a(x)
            self.prep_p1(otag)
            a(f's_waitcnt vmcnt(0)\ns_branch L_next{sfx}')
        a(f's_cbranch_scc1 L_mpoll{sfx}')
        RA, RB = [6, 7, 8, 9], [4, 5, 10, 11]
        T = Q(12) + 2
        def rload(R, M):
            for i in range(4):
                if M: a(f's_mov_b64 exec, s[{M+2*i}:{M+2*i+1}]')
                a(f'buffer_load_dwordx4 {q4(R[i])}, v{VRD}, {WS}, s{S_RD+i} offen sc1')
            if M: a('s_mov_b64 exec, -1')
        def rcheck(R, M, nxt, w):
            for i in range(4):
                a(f's_waitcnt vmcnt({w + 3 - i})')
                mfma(3, R[i], 2, i == 0)
                a(f'v_bitop3_b32 v{T + i%2}, v{Q(R[i])}, v{Q(R[i])+2}, 1 bitop3:{tb}')
                a(f'v_cmp_ne_u32 s[{M+2*i}:{M+2*i+1}], 0, v{T + i%2}')
            a(f"""
            s_or_b64 vcc, s[{M}:{M+1}], s[{M+2}:{M+3}]
            s_or_b64 vcc, vcc, s[{M+4}:{M+5}]
            s_or_b64 vcc, vcc, s[{M+6}:{M+7}]
            s_cbranch_scc0 {nxt}
            """)
        delay(self.opt.get('d1', 0))
        rload(RA, None)
        for jj in range(4): a(f'v_cndmask_b32 v{Q(2)+jj}, 0, v{VBD}, s[{S_SEL+2*jj}:{S_SEL+2*jj+1}]')
        if self.opt.get('rsingle'):
            a(f'L_rpoll{sfx}:')
            rcheck(RA, S_MA, f'L_rgot{sfx}', 0)
            rload(RA, S_MA)
        else:
            delay(self.opt.get('g1', 16))
            rload(RB, None)
            a(f'L_rpoll{sfx}:')
            rcheck(RA, S_MA, f'L_rgot{sfx}', 4)
            rload(RA, S_MA)
            rcheck(RB, S_MB, f'L_rgot{sfx}', 4)
            rload(RB, S_MB)
        a(f"""
        s_add_u32 s{S_SPIN}, s{S_SPIN}, 1
        s_cmp_gt_u32 s{S_SPIN}, 0x40000
        s_cbranch_scc0 L_rpoll{sfx}
        s_branch L_chain_fail
        L_rgot{sfx}:
        """)
        self.stamp('rgot')
        D = Q(3)
        a(f"""
        v_permlane32_swap_b32 v{D}, v{D+2}
        v_permlane32_swap_b32 v{D+1}, v{D+3}
        v_add_f32 v{D}, v{D}, v{D+2}
        v_add_f32 v{D+1}, v{D+1}, v{D+3}
        v_cvt_pk_bf16_f32 v{D}, v{D}, v{D+1}
        v_mov_b32 v{D+1}, v{D}
        s_add_u32 s{S_C1}, s{S_C1}, s{S_SPIN}
        s_mov_b32 s{S_SPIN}, 0
        v_permlane32_swap_b32 v{D}, v{D+1}
        {settag(D)}
        s_mov_b64 exec, s[{S_MSK}:{S_MSK+1}]
        buffer_store_dwordx2 {vr(D, 2)}, v{VPST}, {WS}, s{S_MST} offen {stf}
        """)
        if self.debug:
            a(f'buffer_store_dwordx2 {vr(D, 2)}, v{VPST}, {WS}, s{S_HIST} offen')
        a(f's_mov_b64 exec, -1\ns_waitcnt vmcnt({2 if self.debug else 1})')
        a(f'L_mpoll{sfx}:')
        for x in self.kx_dma(): a(x)
        a(f'L_mre{sfx}:')
        self.prep_p1(otag)
        delay(self.opt.get('d2', 0))
        a(f's_add_u32 s{S_T0}, s{S_MLD}, 1024\ns_cmp_ge_u32 s{S_W}, 2\ns_cbranch_scc1 L_w3{sfx}')
        TG = [Q(12) + 1, Q(12) + 2]
        T = Q(12) + 3
        def mround(t):
            a(f'buffer_load_dword v{TG[t]}, v{VMT}, {WS}, s{S_MTG} offen sc1')
            a(f's_mov_b32 m0, s{S_MM0}\ns_nop 0')
            a(f'buffer_load_dwordx4 v{VB}, {WS}, s{S_MLD} offen sc1 lds')
            a(f's_add_u32 m0, s{S_MM0}, 1024\ns_nop 0')
            for j in range(4): a(f'buffer_load_dwordx4 v{VB}, {WS}, s{S_T0} offen offset:{1024*j} sc1 lds')
        def mcheck(t, w):
            a(f"""
            s_waitcnt vmcnt({w})
            v_and_b32 v{T}, 1, v{TG[t]}
            v_cmp_ne_u32 vcc, {otag}, v{T}
            s_cbranch_vccz L_mgot{sfx}
            """)
        if self.opt.get('force_redo'):
            a(f's_cmp_eq_u32 s{S_IOF}, 0xf0000000\ns_cbranch_scc1 L_fr{sfx}')
            mround(0); a(f's_waitcnt vmcnt(0)\ns_branch L_next{sfx}\nL_fr{sfx}:')
        if self.opt.get('msingle'):
            a(f'L_mloop{sfx}:')
            mround(0)
            mcheck(0, 5)
        else:
            mround(0)
            delay(self.opt.get('g2', 24))
            a(f'L_mloop{sfx}:')
            mround(1)
            mcheck(0, 11)
            mround(0)
            mcheck(1, 11)
        a(f"""
        s_add_u32 s{S_SPIN}, s{S_SPIN}, 1
        s_cmp_gt_u32 s{S_SPIN}, 0x40000
        s_cbranch_scc0 L_mloop{sfx}
        s_branch L_chain_fail
        """)
        a(f"""
        L_redo{stf.replace(" ", "") + str(1 - par)}:
        s_waitcnt vmcnt(0) lgkmcnt(0)
        s_barrier
        s_sub_u32 s{S_STEP}, s{S_STEP}, 1
        s_sub_u32 s{S_HIST}, s{S_HIST}, 9216
        s_mov_b32 s{S_SPIN}, 0
        s_mov_b32 s{S_IOF}, 0xf0000000
        s_branch L_mre{sfx}
        L_w3{sfx}:
        s_waitcnt vmcnt(0)
        s_branch L_next{sfx}
        L_mgot{sfx}:
        s_add_u32 s{S_C2}, s{S_C2}, s{S_SPIN}
        s_waitcnt vmcnt({0 if self.opt.get('msingle') else 6})
        L_next{sfx}:
        """)
        self.stamp('mgot')
        if self.stamps and par == 0:
            lab = a.uid('Lst')
            a(f's_cmp_eq_u32 s{S_STEP}, 20\ns_cbranch_scc0 {lab}\ns_waitcnt lgkmcnt(0)')
            a(f's_lshl_b32 s{S_T0}, s{S_H}, 2\ns_add_u32 s{S_T0}, s{S_T0}, s{S_W}\ns_lshl_b32 s{S_T0}, s{S_T0}, 7\ns_add_u32 s{S_T0}, s{S_T0}, {WS_STAMP}')
            a(f's_mov_b64 exec, 1')
            for i in range(len(self.stamps)):
                a(f'v_mov_b32 v59, s{S_ST+2*i}\nbuffer_store_dword v59, off, {WS}, s{S_T0} offset:{4*i}')
            for i, r in enumerate((S_C1, S_C2)):
                a(f'v_mov_b32 v59, s{r}\nbuffer_store_dword v59, off, {WS}, s{S_T0} offset:{64+4*i}')
            a(f's_mov_b64 exec, -1\n{lab}:')
        a(f"""
        s_add_u32 s{S_STEP}, s{S_STEP}, 1
        s_add_u32 s{S_HIST}, s{S_HIST}, 9216
        s_waitcnt lgkmcnt(0)
        """)
        a.reset_counters()
    def loop(self, stf):
        a = self.a
        sfx = stf.replace(' ', '')
        a(f'L_step{sfx}:')
        self.step(stf, 0)
        self.step(stf, 1)
        a(f's_branch L_step{sfx}')
        a(f'L_chain_last{sfx}:')
        a(f"""
        v_add_u32 v{Q(8)}, s{S_XVO}, v{VB}
        ds_read_b128 {q4(8)}, v{Q(8)}
        s_waitcnt lgkmcnt(0)
        buffer_store_dwordx4 {q4(8)}, v{VB}, {WS}, s{S_VMS} offen sc1
        s_waitcnt vmcnt(0)
        s_branch L_chain_done
        """)
```

```python
from layout import *
def header(name, a, ngrid):
    a.raw(f'''.globl {name}
.p2align 8
.type {name},@function
{name}:''')
    a(f'''
    s_cmp_ge_u32 s2, {ngrid}
    s_cbranch_scc0 L_{name}_go
    s_endpgm
    L_{name}_go:
    s_load_dwordx2 s[4:5], s[0:1], {KA_WS}
    s_load_dwordx2 s[8:9], s[0:1], {KA_DBG}
    v_lshrrev_b32 v1, 6, v0
    s_waitcnt lgkmcnt(0)
    s_mov_b32 s6, {WS_SIZE}
    s_mov_b32 s7, 0x00020000
    s_mov_b32 s10, 256
    s_mov_b32 s11, 0x00020000
    v_readfirstlane_b32 s13, v1
    ''')
def descriptor(name, vgpr=512, accum=256):
    return f'''.amdhsa_kernel {name}
  .amdhsa_next_free_vgpr {vgpr}
  .amdhsa_next_free_sgpr 102
  .amdhsa_accum_offset {accum}
  .amdhsa_group_segment_fixed_size 0
  .amdhsa_kernarg_size 120
  .amdhsa_user_sgpr_count 2
  .amdhsa_user_sgpr_kernarg_segment_ptr 1
  .amdhsa_system_sgpr_workgroup_id_x 1
.end_amdhsa_kernel
'''
```

```python
from asmlib import *
from layout import *

S_WS = 4; S_DBG = 8
S_MT, S_W, S_GRP = 12, 13, 14
S_X = 16
S_A = 20; S_B = 24
S_PQ, S_PK, S_PV, S_PG, S_PU = 28, 30, 32, 34, 36
S_T0, S_T1, S_T2, S_T3 = 38, 39, 40, 41
S_FB, S_FC, S_FOFF, S_FSTEP, S_FSLOT = 42, 43, 44, 45, 46
S_CB, S_CC = 47, 48
S_BLK, S_EOFF = 49, 50
S_GW = 52
S_FADV = 57
S_RSL = 56
WS = f's[{S_WS}:{S_WS+3}]'
NSLOT = 8
V_LQ, V_LG, V_F = 1, 2, 3
V_R = 4
V_RC = 8
V_EK, V_EV, V_EH, V_SG = 12, 13, 14, 16
V_T = 18
V_AF = 32
V_XX = 64
V_ACC = 96
V_E = 224
def xf(t, ks):
    n = t * 36 + ks
    return vr(4 * n, 4, 'a') if n < 64 else vr(V_XX + 4 * (n - 64), 4)
def acc(t, ct): return V_ACC + 16 * (4 * t + ct)

class Gemm1:
    def __init__(self, a, stf='', nblk=6):
        self.a = a; self.stf = stf; self.nblk = nblk
    def blockid(self, dst, i):
        self.a(f's_mul_i32 s{dst}, s{i}, 28\ns_add_u32 s{dst}, s{dst}, s{S_GRP}')
    def fetch_setup(self):
        a = self.a
        lg = a.uid('Lg'); le = a.uid('Le')
        self.blockid(S_T0, S_FB)
        a(f'''
        s_cmp_ge_u32 s{S_T0}, 96
        s_cbranch_scc1 {lg}
        s_lshr_b32 s{S_T1}, s{S_T0}, 5
        s_cmp_eq_u32 s{S_T1}, 0
        s_cselect_b64 s[{S_A}:{S_A+1}], s[{S_PK}:{S_PK+1}], s[{S_PV}:{S_PV+1}]
        s_cmp_eq_u32 s{S_T1}, 2
        s_cselect_b64 s[{S_A}:{S_A+1}], s[{S_PQ}:{S_PQ+1}], s[{S_A}:{S_A+1}]
        s_mov_b32 s{S_A+2}, 4718592
        s_and_b32 s{S_T0}, s{S_T0}, 31
        s_lshl_b32 s{S_FOFF}, s{S_T0}, 8
        s_lshl_b32 s{S_T1}, s{S_W}, 17
        s_add_u32 s{S_FOFF}, s{S_FOFF}, s{S_T1}
        s_mov_b32 s{S_FSTEP}, {4*8192}
        s_mov_b32 s{S_FADV}, {13*4*8192}
        v_mov_b32 v{V_F}, v{V_LQ}
        s_branch {le}
        {lg}:
        s_cmp_lt_u32 s{S_W}, 2
        s_cselect_b64 s[{S_A}:{S_A+1}], s[{S_PG}:{S_PG+1}], s[{S_PU}:{S_PU+1}]
        s_mov_b32 s{S_A+2}, 5308416
        s_sub_u32 s{S_T0}, s{S_T0}, 96
        s_lshl_b32 s{S_FOFF}, s{S_T0}, 7
        s_and_b32 s{S_T1}, s{S_W}, 1
        s_mul_i32 s{S_T1}, s{S_T1}, {32*9216}
        s_add_u32 s{S_FOFF}, s{S_FOFF}, s{S_T1}
        s_mov_b32 s{S_FSTEP}, {8*9216}
        s_mov_b32 s{S_FADV}, {5*8*9216}
        v_mov_b32 v{V_F}, v{V_LG}
        {le}:
        ''')
    def fetch_items(self):
        it = []
        for j in range(4):
            it.append(f's_add_u32 m0, s{S_FSLOT}, {1024*j}\n' + (f's_add_u32 s{S_FOFF}, s{S_FOFF}, s{S_FSTEP}' if j else 's_nop 0') +
                      f'\nbuffer_load_dwordx4 v{V_F}, s[{S_A}:{S_A+3}], s{S_FOFF} offen lds')
        it.append(f's_add_u32 s{S_FOFF}, s{S_FOFF}, s{S_FADV}\ns_add_u32 s{S_FSLOT}, s{S_FSLOT}, 16384\ns_and_b32 s{S_FSLOT}, s{S_FSLOT}, {NSLOT*16384 - 1}')
        return it
    def fetch_next_block(self):
        a = self.a
        a(f's_add_u32 s{S_FB}, s{S_FB}, 1')
        self.fetch_setup()
        a(f's_cmp_lt_u32 s{S_FB}, {self.nblk}\ns_cselect_b32 s{S_A+2}, s{S_A+2}, 0')
    def setup(self):
        a = self.a
        for r, ka in ((S_X, KA_X), (S_PQ, KA_WQ), (S_PK, KA_WK), (S_PV, KA_WV), (S_PG, KA_WG), (S_PU, KA_WU), (S_GW, KA_GW)):
            a(f's_load_dwordx2 s[{r}:{r+1}], s[0:1], {ka}')
        a(f'''
        s_waitcnt lgkmcnt(0)
        s_mov_b32 s{S_X+2}, 2359296
        s_mov_b32 s{S_X+3}, 0x00020000
        s_mov_b32 s{S_GW+2}, 1152
        s_mov_b32 s{S_GW+3}, 0x00020000
        s_mov_b64 s[{S_A}:{S_A+1}], s[{S_PK}:{S_PK+1}]
        s_mov_b32 s{S_A+2}, 0
        s_mov_b32 s{S_A+3}, 0x00020000
        ''')
        L, T0, T1, T2, T3 = V_T, V_T + 1, V_T + 2, V_T + 3, V_T + 4
        a(f'''
        v_and_b32 v{L}, 63, v0
        v_lshrrev_b32 v{T0}, 4, v{L}
        v_and_b32 v{T1}, 15, v{L}
        v_lshlrev_b32 v{T2}, 2, v{T0}
        v_xor_b32 v{T1}, v{T1}, v{T2}
        v_lshlrev_b32 v{T1}, 4, v{T1}
        v_lshl_add_u32 v{V_LQ}, v{T0}, 13, v{T1}
        v_lshrrev_b32 v{T0}, 3, v{L}
        v_and_b32 v{T1}, 7, v{L}
        v_bfe_u32 v{T2}, v{L}, 4, 1
        v_lshlrev_b32 v{T2}, 2, v{T2}
        v_xor_b32 v{T1}, v{T1}, v{T2}
        v_lshlrev_b32 v{T1}, 4, v{T1}
        v_mul_u32_u24 v{T0}, 9216, v{T0}
        v_add_u32 v{V_LG}, v{T0}, v{T1}
        s_lshl_b32 s{S_FSLOT}, s{S_W}, 12
        s_mov_b32 s{S_FB}, 0
        s_mov_b32 s{S_FC}, 0
        ''')
        self.fetch_setup()
        for x in self.fetch_items(): a(x)
        VO = V_ACC
        for j in range(18):
            a(f'''
            v_add_u32 v{T0}, {64*j}, v{L}
            v_mul_u32_u24 v{T1}, 911, v{T0}
            v_lshrrev_b32 v{T1}, 16, v{T1}
            v_bfe_u32 v{T2}, v{T1}, 1, 3
            v_xor_b32 v{T0}, v{T0}, v{T2}
            v_lshlrev_b32 v{VO + j}, 4, v{T0}
            ''')
        a(f'''
        s_lshl_b32 s{S_T0}, s{S_MT}, 2
        s_add_u32 s{S_T0}, s{S_T0}, s{S_W}
        s_mul_i32 s{S_T0}, s{S_T0}, {64*1152}
        s_mul_i32 s{S_T1}, s{S_W}, 36864
        s_add_u32 s{S_T1}, s{S_T1}, 16384
        ''')
        def xdma(r):
            for j in range(18):
                a(f's_add_u32 m0, s{S_T1}, {(r % 2) * 18432 + 1024*j}')
                a(f's_add_u32 s{S_T2}, s{S_T0}, {r * 18432}' if j == 0 else 's_nop 0')
                a(f'buffer_load_dwordx4 v{VO + j}, s[{S_X}:{S_X+3}], s{S_T2} offen lds', tag=('x', r))
        xdma(0); xdma(1)
        XR = V_ACC + 20
        a(f'''
        v_and_b32 v{T0}, 15, v{L}
        v_lshrrev_b32 v{T2}, 1, v{T0}
        v_mul_u32_u24 v{T0}, 1152, v{T0}
        v_add_u32 v{T0}, s{S_T1}, v{T0}
        v_lshrrev_b32 v{T1}, 5, v{L}
        v_xor_b32 v{T2}, v{T2}, v{T1}
        ''')
        for m in range(4):
            a(f'v_xor_b32 v{T3}, {2*m}, v{T2}\nv_lshl_add_u32 v{XR + m}, v{T3}, 4, v{T0}')
        a(f'v_lshlrev_b32 v{T2}, 4, v{T1}')
        for r in range(4):
            a.wait_vm(('x', r))
            a(f's_mov_b32 exec_lo, {"0xffff0000" if r % 2 else "0x0000ffff"}\ns_mov_b32 exec_hi, {"0xffff0000" if r % 2 else "0x0000ffff"}')
            for ks in range(36):
                a(f'ds_read_b128 {xf(r // 2, ks)}, v{XR + ks % 4} offset:{(r % 2) * 18432 + 128 * (ks // 4)}')
                if ks % 12 == 11: a('s_waitcnt lgkmcnt(6)')
            a('s_mov_b64 exec, -1\ns_waitcnt lgkmcnt(0)')
            if r + 2 < 4: xdma(r + 2)
            if r == 0: a('s_memtime s[92:93]')
        a('s_memtime s[94:95]')
        for ks in range(36):
            a(f'buffer_load_dwordx4 {vr(V_ACC + 4*ks if ks < 32 else V_AF + 4*(ks-32), 4)}, v{T2}, s[{S_GW}:{S_GW+3}], 0 offen offset:{32*ks}')
        a('s_barrier')
        for c in range(5):
            for x in self.fetch_items(): a(x)
        a.reset_counters()
        a(f'''
        v_and_b32 v{T0}, 31, v{L}
        v_lshrrev_b32 v{T1}, 5, v{L}
        v_bfe_u32 v{T2}, v{T0}, 2, 1
        v_lshlrev_b32 v{V_EK}, 10, v{T2}
        v_lshrrev_b32 v{T2}, 3, v{T0}
        v_and_b32 v{T3}, 3, v{T0}
        v_lshl_add_u32 v{T2}, v{T2}, 2, v{T3}
        v_lshl_add_u32 v{T2}, v{T1}, 4, v{T2}
        v_lshl_add_u32 v{V_EK}, v{T2}, 4, v{V_EK}
        v_lshrrev_b32 v{T2}, 4, v{T0}
        v_lshl_add_u32 v{T2}, v{T2}, 2, v{T3}
        v_lshlrev_b32 v{V_EV}, 8, v{T2}
        v_bfe_u32 v{T2}, v{T0}, 2, 2
        v_lshl_add_u32 v{V_EV}, v{T2}, 6, v{V_EV}
        v_lshl_add_u32 v{V_EV}, v{T1}, 4, v{V_EV}
        v_lshlrev_b32 v{V_EH}, 4, v{L}
        ''')
        a('s_waitcnt vmcnt(20)\ns_memtime s[96:97]')
        for t in range(2):
            for ks in range(36):
                g = vr(V_ACC + 4*ks if ks < 32 else V_AF + 4*(ks-32), 4)
                a(f'v_mfma_f32_32x32x16_bf16 {vr(V_E + 16*t, 16)}, {g}, {xf(t, ks)}, {vr(V_E + 16*t, 16) if ks else 0}')
        for t in range(2):
            a(f'''
            v_mul_f32 v{T2}, 0x3fb8aa3b, v{V_E + 16*t}
            v_exp_f32 v{T3}, v{T2}
            v_exp_f32_e64 v{T2}, -v{T2}
            v_add_f32 v{T3}, 1.0, v{T3}
            v_add_f32 v{T2}, 1.0, v{T2}
            v_rcp_f32 v{V_SG + t}, v{T3}
            v_rcp_f32 v{V_T + 5 + t}, v{T2}
            ''')
        lab = a.uid('Lng')
        a(f'''
        s_cmp_eq_u32 s{S_GRP}, 0
        s_cbranch_scc0 {lab}
        s_lshl_b32 s{S_T0}, s{S_MT}, 2
        s_add_u32 s{S_T0}, s{S_T0}, s{S_W}
        s_lshl_b32 s{S_T0}, s{S_T0}, 8
        s_add_u32 s{S_T0}, s{S_T0}, {WS_G}
        v_lshlrev_b32 v{T0}, 2, v{T0}
        buffer_store_dword v{V_T + 5}, v{T0}, {WS}, s{S_T0} offen {self.stf}
        buffer_store_dword v{V_T + 6}, v{T0}, {WS}, s{S_T0} offen offset:128 {self.stf}
        {lab}:
        ''')
        a.reset_counters()
    def read_bases(self, glu):
        a = self.a
        L, A_, T0, T1 = V_T, V_T + 1, V_T + 2, V_T + 3
        a(f'''
        v_bfe_u32 v{A_}, v{L}, 2, 2
        v_lshrrev_b32 v{T0}, 5, v{L}
        v_lshl_add_u32 v{T0}, v{T0}, 3, v{A_}
        v_lshlrev_b32 v{T0}, {7 if glu else 8}, v{T0}
        v_bfe_u32 v{T1}, v{L}, 4, 1
        v_lshl_add_u32 v{T0}, v{T1}, 5, v{T0}
        v_and_b32 v{T1}, 3, v{L}
        v_lshl_add_u32 v{T0}, v{T1}, 3, v{T0}
        ''')
        if glu: a(f'v_lshrrev_b32 v{A_}, 1, v{A_}')
        for ct in range(4):
            a(f'v_xor_b32 v{T1}, {ct % 2 if glu else ct}, v{A_}')
            a(f'v_lshl_add_u32 v{V_R + ct}, v{T1}, 6, v{T0}')
            if glu and ct >= 2: a(f'v_add_u32 v{V_R + ct}, 8192, v{V_R + ct}')
    def block(self, glu):
        a = self.a
        rs = 128 if glu else 256
        def rd(u, st, i):
            ct, y = i // 2, i % 2
            a(f'ds_read_b64_tr_b16 {vr(V_AF + 16*st + 4*ct + 2*y, 2)}, v{V_RC + ct} offset:{(16*u + 4*y) * rs}', tag=('af', st))
        def newslot():
            return [f'v_add_u32 v{V_RC + ct}, s{S_RSL}, v{V_R + ct}' for ct in range(4)]
        for x in newslot(): a(x)
        for i in range(8): rd(0, 0, i)
        n = 0
        for c in range(9):
            for u in range(4):
                ks = 4 * c + u
                st = n % 2
                side = []
                if u == 0:
                    side = [f's_waitcnt vmcnt({(16 + 8) if c < 5 else 16})\ns_barrier'] + self.fetch_items()
                    side.append(f's_add_u32 s{S_RSL}, s{S_RSL}, 16384\ns_and_b32 s{S_RSL}, s{S_RSL}, {NSLOT*16384 - 1}')
                if u == 1 and c == 2: side = [self.fetch_next_block]
                a.wait_lgkm(('af', st))
                for i in range(8):
                    ct, t = i // 2, i % 2
                    d = vr(acc(t, ct), 16)
                    a(f'v_mfma_f32_32x32x16_bf16 {d}, {vr(V_AF + 16*st + 4*ct, 4)}, {xf(t, ks)}, {d if ks else 0}')
                    if ks < 35: rd((u + 1) % 4, 1 - st, i)
                    if u == 2 and i % 2 == 1 and c < 8: a(newslot()[i // 2])
                    if side:
                        x = side.pop(0)
                        x() if callable(x) else a(x)
                n += 1
        a.reset_counters()
    def epilogue(self, kind):
        a = self.a
        k = 0
        for t in range(2):
            for ct in range(2 if kind == 'h' else 4):
                D = acc(t, ct)
                if kind == 'h':
                    U = acc(t, ct + 2)
                    for i in range(16): a(f'v_mul_f32 v{D+i}, v{D+i}, v{U+i}')
                    for i in range(16): a(f'v_mul_f32 v{D+i}, v{D+i}, v{V_SG + t}')
                for q in range(2):
                    e = V_E + 4 * (k % 8); k += 1
                    for r in range(4): a(f'v_cvt_pk_bf16_f32 v{e+r}, v{D + 4*q + r}, v{D + 4*q + r + 8}')
                    if kind == 'kq': v = V_EK; off = 2048 * ct + 512 * q
                    elif kind == 'v': v = V_EV; off = 2048 * ct + 32 * q
                    else: v = V_EH; off = 2048 * ct + 1024 * q
                    so = S_EOFF + (1 if off >= 4096 else 0) if kind != 'h' else S_EOFF
                    a(f'buffer_store_dwordx4 {vr(e, 4)}, v{v}, {WS}, s{so} offen offset:{off % 4096} {self.stf}')
            if t == 0:
                step = 288 * 1024 if kind == 'h' else 32 * 8192
                a(f's_add_u32 s{S_EOFF}, s{S_EOFF}, {step}\ns_add_u32 s{S_EOFF+1}, s{S_EOFF+1}, {step}')
    def main(self, after_block=None):
        a = self.a
        a(f's_mov_b32 s{S_CB}, 0\ns_mov_b32 s{S_RSL}, 0\ns_waitcnt vmcnt(0)\ns_barrier')
        a('L_g1_blk:')
        self.blockid(S_BLK, S_CB)
        a(f's_cmp_ge_u32 s{S_BLK}, 96\ns_cbranch_scc1 L_g1_glu')
        self.read_bases(False)
        self.block(False)
        a(f'''
        s_lshl_b32 s{S_T0}, s{S_MT}, 2
        s_add_u32 s{S_T0}, s{S_T0}, s{S_W}
        s_lshl_b32 s{S_T0}, s{S_T0}, 19
        s_and_b32 s{S_T1}, s{S_BLK}, 31
        s_lshl_b32 s{S_T1}, s{S_T1}, 13
        s_add_u32 s{S_T0}, s{S_T0}, s{S_T1}
        s_lshr_b32 s{S_T1}, s{S_BLK}, 5
        s_cmp_eq_u32 s{S_T1}, 2
        s_cselect_b32 s{S_T2}, {WS_QP}, {WS_KP}
        s_cmp_eq_u32 s{S_T1}, 1
        s_cselect_b32 s{S_T2}, {WS_VP}, s{S_T2}
        s_add_u32 s{S_EOFF}, s{S_T0}, s{S_T2}
        s_add_u32 s{S_EOFF+1}, s{S_EOFF}, 4096
        s_cmp_eq_u32 s{S_T1}, 1
        s_cbranch_scc1 L_g1_v
        ''')
        self.epilogue('kq')
        a('s_branch L_g1_next\nL_g1_v:')
        self.epilogue('v')
        a('s_branch L_g1_next\nL_g1_glu:')
        self.read_bases(True)
        self.block(True)
        a(f'''
        s_lshl_b32 s{S_T0}, s{S_MT}, 2
        s_add_u32 s{S_T0}, s{S_T0}, s{S_W}
        s_mul_i32 s{S_T0}, s{S_T0}, {2*288*1024}
        s_sub_u32 s{S_T1}, s{S_BLK}, 96
        s_lshl_b32 s{S_T1}, s{S_T1}, 12
        s_add_u32 s{S_T0}, s{S_T0}, s{S_T1}
        s_add_u32 s{S_EOFF}, s{S_T0}, {WS_H}
        ''')
        self.epilogue('h')
        a('L_g1_next:')
        if after_block: after_block()
        a(f's_add_u32 s{S_CB}, s{S_CB}, 1\ns_cmp_lt_u32 s{S_CB}, {self.nblk}\ns_cbranch_scc1 L_g1_blk')
```

```python
MB = 1 << 20
WS_QP = 0
WS_KP = 16 * MB
WS_VP = 32 * MB
WS_H = 48 * MB
WS_O = 72 * MB
WS_KM = 96 * MB
WS_VM = 101 * MB
WS_PART = 112 * MB
WS_MBUF = 113 * MB
WS_MHIST = 114 * MB
WS_STAMP = 115 * MB
WS_G = 116 * MB
WS_BP = 117 * MB
WS_SIZE = 256 * MB
PSTRIDE = 73 * 128
KA_X, KA_MEM0, KA_WQ, KA_WK, KA_WV, KA_WO = 0, 8, 16, 24, 32, 40
KA_WG, KA_WU, KA_WD, KA_GW, KA_OUT, KA_DBG, KA_WS = 64, 72, 80, 88, 96, 104, 112
```

```python
from asmlib import *
from layout import *
S_WS = 4
S_CT, S_W, S_SEG = 12, 13, 14
S_WT = 16
S_OUT = 20
S_T0, S_T1, S_T2, S_T3 = 24, 25, 26, 27
S_LB, S_PAR = 28, 29
WS = f's[{S_WS}:{S_WS+3}]'
V_L16, V_F, V_R, V_OA, V_RW, V_RR = 1, 2, 3, 4, 5, 6
V_T = 8
V_D = 16
V_BP = 32
V_RED = 36
V_WX = 64
V_RING = 96
NRING = 40
L_RED = 131072
def wf(n): return vr(4 * n, 4, 'a') if n < 64 else vr(V_WX + 4 * (n - 64), 4)
class Out:
    def __init__(self, a, part, ldf='', stf=''):
        self.a = a; self.part = part; self.nf = 72 if part == 'h' else 64; self.ldf = ldf; self.stf = stf
    def setup(self):
        a = self.a; nf = self.nf
        L, T0, T1, A_ = V_T, V_T + 1, V_T + 2, V_T + 3
        a(f'''
        s_load_dwordx2 s[{S_WT}:{S_WT+1}], s[0:1], {KA_WD if self.part == 'h' else KA_WO}
        s_load_dwordx2 s[{S_OUT}:{S_OUT+1}], s[0:1], {KA_OUT}
        v_and_b32 v{L}, 63, v0
        v_lshlrev_b32 v{V_L16}, 4, v{L}
        v_lshrrev_b32 v{T0}, 2, v{L}
        v_mul_u32_u24 v{T0}, 1152, v{T0}
        v_and_b32 v{T1}, 3, v{L}
        v_lshl_add_u32 v{V_F}, v{T1}, 4, v{T0}
        s_lshl_b32 s{S_LB}, s{S_W}, 15
        v_bfe_u32 v{A_}, v{L}, 2, 2
        v_and_b32 v{T0}, 1, v{A_}
        v_lshlrev_b32 v{T0}, 4, v{T0}
        v_lshrrev_b32 v{T1}, 5, v{L}
        v_lshl_add_u32 v{T0}, v{T1}, 2, v{T0}
        v_lshrrev_b32 v{T1}, 1, v{A_}
        v_add_u32 v{T0}, v{T0}, v{T1}
        v_lshlrev_b32 v{T0}, 6, v{T0}
        v_bfe_u32 v{T1}, v{L}, 4, 1
        v_lshl_add_u32 v{T0}, v{T1}, 5, v{T0}
        v_and_b32 v{T1}, 1, v{L}
        v_lshl_add_u32 v{T0}, v{T1}, 4, v{T0}
        v_bfe_u32 v{T1}, v{L}, 1, 1
        v_lshl_add_u32 v{T0}, v{T1}, 3, v{T0}
        v_add_u32 v{V_R}, s{S_LB}, v{T0}
        s_lshl_b32 s{S_T0}, s{S_W}, 12
        s_add_u32 s{S_T0}, s{S_T0}, {L_RED}
        v_add_u32 v{V_RW}, s{S_T0}, v{V_L16}
        s_lshl_b32 s{S_T0}, s{S_W}, 10
        s_add_u32 s{S_T0}, s{S_T0}, {L_RED}
        v_add_u32 v{V_RR}, s{S_T0}, v{V_L16}
        v_and_b32 v{T0}, 31, v{L}
        v_mul_u32_u24 v{T0}, 1152, v{T0}
        v_lshrrev_b32 v{T1}, 5, v{L}
        v_lshl_add_u32 v{V_OA}, v{T1}, 4, v{T0}
        s_waitcnt lgkmcnt(0)
        s_mov_b32 s{S_WT+2}, {nf*64*1152}
        s_mov_b32 s{S_WT+3}, 0x00020000
        s_mov_b32 s{S_OUT+2}, 2359296
        s_mov_b32 s{S_OUT+3}, 0x00020000
        s_mul_i32 s{S_T0}, s{S_W}, {nf*16*1152}
        s_lshl_b32 s{S_T1}, s{S_CT}, 6
        s_add_u32 s{S_T0}, s{S_T0}, s{S_T1}
        s_mov_b32 s{S_PAR}, 0
        ''')
        nch = nf // 4
        def issue(c):
            for x in range(4):
                a(f's_add_u32 m0, s{S_LB}, {(c % 8) * 4096 + 1024*x}\ns_add_u32 s{S_T1}, s{S_T0}, {(64*c + 16*x) * 1152}')
                a(f'buffer_load_dwordx4 v{V_F}, s[{S_WT}:{S_WT+3}], s{S_T1} offen lds', tag=('w', c))
        for c in range(8): issue(c)
        for c in range(nch):
            a.wait_vm(('w', c))
            for u in range(4):
                f, b = ('a', 4 * (4*c + u)) if 4*c + u < 64 else ('v', V_WX + 4 * (4*c + u - 64))
                for y in range(2):
                    a(f'ds_read_b64_tr_b16 {vr(b + 2*y, 2, f)}, v{V_R} offset:{(c % 8) * 4096 + (32*(u//2) + 8*(u%2) + 2*y) * 64}')
            a.wait_lgkm()
            if c + 8 < nch: issue(c + 8)
        a.reset_counters()
    def task(self):
        a = self.a; nf = self.nf; ld = self.ldf
        img = WS_H if self.part == 'h' else WS_O
        a(f'''
        s_lshl_b32 s{S_T0}, s{S_SEG}, 2
        s_add_u32 s{S_T0}, s{S_T0}, s{S_W}
        s_mul_i32 s{S_T0}, s{S_T0}, {nf*1024}
        s_add_u32 s{S_T0}, s{S_T0}, {img}
        s_mul_i32 s{S_T2}, s{S_SEG}, 18
        s_add_u32 s{S_T2}, s{S_T2}, s{S_CT}
        s_lshl_b32 s{S_T2}, s{S_T2}, 2
        s_add_u32 s{S_T2}, s{S_T2}, s{S_W}
        s_lshl_b32 s{S_T2}, s{S_T2}, 10
        s_add_u32 s{S_T2}, s{S_T2}, {WS_BP}
        ''')
        if self.part == 'o': a(f'buffer_load_dwordx4 {vr(V_BP, 4)}, v{V_L16}, {WS}, s{S_T2} offen {ld}', tag='bp')
        def load(n):
            if n % 4 == 0 and n: a(f's_add_u32 s{S_T0}, s{S_T0}, 4096')
            a(f'buffer_load_dwordx4 {vr(V_RING + 4*(n % NRING), 4)}, v{V_L16}, {WS}, s{S_T0} offen offset:{1024*(n%4)} {ld}', tag=('f', n))
        for n in range(NRING): load(n)
        d = vr(V_D, 16)
        for n in range(nf):
            if n % 2 == 0: a.wait_vm(('f', n + 1))
            a(f'v_mfma_f32_32x32x16_bf16 {d}, {wf(n)}, {vr(V_RING + 4*(n % NRING), 4)}, {d if n else 0}')
            if n + NRING < nf: load(n + NRING)
        a(f'v_add_u32 v{V_T}, s{S_PAR}, v{V_RW}\nv_add_u32 v{V_T+1}, s{S_PAR}, v{V_RR}\ns_xor_b32 s{S_PAR}, s{S_PAR}, 16384')
        for q in range(4): a(f'ds_write_b128 v{V_T}, {vr(V_D + 4*q, 4)} offset:{1024*q}')
        a('s_waitcnt lgkmcnt(0)\ns_barrier')
        for w in range(4): a(f'ds_read_b128 {vr(V_RED + 4*w, 4)}, v{V_T+1} offset:{4096*w}')
        a(f'''
        s_mul_i32 s{S_T0}, s{S_SEG}, {32*1152}
        s_lshl_b32 s{S_T1}, s{S_CT}, 6
        s_add_u32 s{S_T0}, s{S_T0}, s{S_T1}
        s_lshr_b32 s{S_T1}, s{S_W}, 1
        s_lshl_b32 s{S_T1}, s{S_T1}, 5
        s_add_u32 s{S_T0}, s{S_T0}, s{S_T1}
        s_and_b32 s{S_T1}, s{S_W}, 1
        s_lshl_b32 s{S_T1}, s{S_T1}, 3
        s_add_u32 s{S_T0}, s{S_T0}, s{S_T1}
        s_waitcnt lgkmcnt(0)
        ''')
        for r in range(4):
            a(f'v_add_f32 v{V_RED+r}, v{V_RED+r}, v{V_RED+4+r}\nv_add_f32 v{V_RED+8+r}, v{V_RED+8+r}, v{V_RED+12+r}')
        for r in range(4): a(f'v_add_f32 v{V_RED+r}, v{V_RED+r}, v{V_RED+8+r}')
        if self.part == 'h':
            a(f'buffer_store_dwordx4 {vr(V_RED, 4)}, v{V_L16}, {WS}, s{S_T2} offen {self.stf}')
        else:
            for r in range(4): a(f'v_add_f32 v{V_RED+r}, v{V_RED+r}, v{V_BP+r}')
            a(f'v_cvt_pk_bf16_f32 v{V_RED}, v{V_RED}, v{V_RED+1}\nv_cvt_pk_bf16_f32 v{V_RED+1}, v{V_RED+2}, v{V_RED+3}')
            a(f'buffer_store_dwordx2 {vr(V_RED, 2)}, v{V_OA}, s[{S_OUT}:{S_OUT+3}], s{S_T0} offen')
        a.reset_counters()
```

```python
import sys
from asmlib import *
from common import *
import gemm1, chain4, att, outg
NAME = 'gated_mix__memory_aug_recurrent_mem_tr__glu_gated_bilinear__prompt'
hdr = open('cdna_kernels/' + NAME + '.s.ref').read().split('\n')
hdr = [l for l in hdr if l.startswith(';') and '@launch' not in l and 'Override launch' not in l and 'grid=ceil' not in l]
R = 12
out = '\n'.join(hdr) + f'''
; @launch kernel=up_kernel grid=(224,1,1) block=(256,1,1) lds=163840
; @launch kernel=chain_kernel grid=(256,1,1) block=(256,1,1) lds=163840
; @launch kernel=att_kernel grid=(512,1,1) block=(256,1,1) lds=57344
; @launch kernel=down_kernel grid=({18*R},1,1) block=(256,1,1) lds=163840
; @launch kernel=outp_kernel grid=({18*R},1,1) block=(256,1,1) lds=163840
.amdgcn_target "amdgcn-amd-amdhsa--gfx950"
.text
'''
desc = ''
a = Asm(); header('up_kernel', a, 224)
a(f's_and_b32 s20, s2, 7\ns_mul_i32 s20, s20, 28\ns_lshr_b32 s21, s2, 3\ns_add_u32 s20, s20, s21\ns_and_b32 s{gemm1.S_MT}, s20, 7\ns_lshr_b32 s{gemm1.S_GRP}, s20, 3')
g = gemm1.Gemm1(a); g.setup(); g.main(); a('s_endpgm')
out += a.finish(); desc += descriptor('up_kernel')
from chain4 import *
a = Asm(); header('chain_kernel', a, 256)
a(f'''
s_getreg_b32 s{S_T0}, hwreg(HW_REG_XCC_ID)
s_and_b32 s{S_T0}, s{S_T0}, 15
s_cmp_eq_u32 s{S_T0}, 0
s_cbranch_scc0 L_chain_done
s_cmp_eq_u32 s{S_W}, 0
s_cbranch_scc0 L_tk
s_mov_b64 exec, 1
v_mov_b32 v1, 1
buffer_atomic_add v1, off, s[{S_DBG}:{S_DBG+3}], 0 sc0
s_waitcnt vmcnt(0)
v_mov_b32 v2, {L_M}
ds_write_b32 v2, v1
s_waitcnt lgkmcnt(0)
s_mov_b64 exec, -1
L_tk:
s_barrier
v_mov_b32 v2, {L_M}
ds_read_b32 v1, v2
s_waitcnt lgkmcnt(0)
v_readfirstlane_b32 s{S_H}, v1
s_barrier
''')
a.reset_counters()
c = Chain(a, opt={'msingle': 1, 'rsingle': 1, 'd1': 64, 'd2': 48}); c.setup(); c.load_weights(); c.first_m(); c.loop('')
a('L_chain_fail:\nL_chain_done:\ns_endpgm')
a.hoist()
out += a.finish(); desc += descriptor('chain_kernel')
a = Asm(); header('att_kernel', a, 512)
t = att.Att(a); t.setup()
a(f's_lshl_b32 s{att.S_HEAD}, s2, 2\ns_add_u32 s{att.S_HEAD}, s{att.S_HEAD}, s13\ns_lshr_b32 s{att.S_SEG}, s{att.S_HEAD}, 5\ns_and_b32 s{att.S_HEAD}, s{att.S_HEAD}, 31')
t.task(); a('s_endpgm')
out += a.finish(); desc += descriptor('att_kernel', 240, 240)
for name, part in (('down_kernel', 'h'), ('outp_kernel', 'o')):
    a = Asm(); header(name, a, 18 * R)
    a(f's_mul_i32 s{outg.S_SEG}, s2, 3641\ns_lshr_b32 s{outg.S_SEG}, s{outg.S_SEG}, 16\ns_mul_i32 s{outg.S_CT}, s{outg.S_SEG}, 18\ns_sub_u32 s{outg.S_CT}, s2, s{outg.S_CT}')
    o = outg.Out(a, part); o.setup()
    a(f'L_{name}_loop:')
    o.task()
    a(f's_add_u32 s{outg.S_SEG}, s{outg.S_SEG}, {R}\ns_cmp_lt_u32 s{outg.S_SEG}, 64\ns_cbranch_scc1 L_{name}_loop\ns_endpgm')
    out += a.finish(); desc += descriptor(name)
out += '.section .rodata,"a"\n.p2align 6\n' + desc.replace('.end_amdhsa_kernel\n.amdhsa', '.end_amdhsa_kernel\n.p2align 6\n.amdhsa')
open(sys.argv[1], 'w').write(out)
print(out.count('\n'), 'lines', len(out), 'bytes')
```

```python
from asmlib import *
from layout import *
import struct

L_M = 131072
L_KX = L_M + 9216
L_VX = L_KX + 8192
L_X = L_VX + 8192
XS = 1160
L_CHALF = L_X + 5120
L_CZERO = L_CHALF + 1024
L_END = L_CZERO + 1024
assert L_END == 163840
IDX, VWL, VB, VBD, VXW, VTR, VTRK, VTRZ, VVX, VPST, VRD, VMT = range(12)
def Q(i): return 12 + 4 * i
def q4(i): return vr(Q(i), 4)
def q8(i): return vr(Q(i), 8)
S_WS = 4
S_DBG = 8
S_H, S_W, S_STEP = 12, 13, 14
S_RD = 16
S_PART, S_MLD, S_MST = 20, 21, 22
S_HAS = 23
S_MSK = 24
S_LO = 26
S_C, S_SPIN = 28, 29
S_T0, S_T1 = 30, 31
S_WQ, S_WK, S_WV, S_WO = 32, 36, 40, 44
S_MA, S_MB = 32, 40
S_WBASE = 48
S_KXS, S_VXS, S_KMS, S_VMS = 49, 50, 51, 52
S_MM0 = 53
S_TM = 54
S_HIST = 56
S_T2, S_T3 = 58, 59
S_MEM0 = 60
S_TCH, S_KXM, S_VXM, S_MTG = 64, 65, 66, 67
S_C1, S_C2, S_IOF = 68, 69, 70
S_XVO = 71
S_SEL = 72
S_ST = 80

def f32(x): return struct.unpack('<I', struct.pack('<f', x))[0]

LDS_DOUBLES = [('q', 1), ('k', 3), ('q', 5), ('k', 7), ('v', 8), ('o', 0, 1), ('o', 1, 3), ('z',)]
def all_doubles():
    d = []
    for X in 'qkv':
        for ks in range(9): d.append((X, ks))
    for pp in range(2):
        for k in range(4): d.append(('o', pp, k))
    d.append(('z',))
    return d
def ops_of(d):
    if d[0] in 'qkv': return [(d[0], 0, d[1]), (d[0], 1, d[1])]
    if d[0] == 'o': return [('o', 2 * d[1], d[2]), ('o', 2 * d[1] + 1, d[2])]
    return [('z', 0), ('z', 1)]
REG_DOUBLES = [d for d in all_doubles() if d not in LDS_DOUBLES]
ORDER = REG_DOUBLES + LDS_DOUBLES
WREG = {}; WLDS = {}
for i, d in enumerate(REG_DOUBLES):
    for j, op in enumerate(ops_of(d)):
        n = 2 * i + j
        WREG[op] = ('a', 8 * n) if n < 32 else ('v', 64 + 8 * (n - 32))
for i, d in enumerate(LDS_DOUBLES):
    slot = (len(REG_DOUBLES) + i) % 8
    for j, op in enumerate(ops_of(d)):
        WLDS[op] = slot * 4096 + j * 2048
def wreg(op):
    f, b = WREG[op]; return vr(b, 8, f)
WS = f's[{S_WS}:{S_WS+3}]'

class Chain:
    def __init__(self, a, debug=False, stamps=False, nsteps=64, opt=None):
        self.a = a; self.debug = debug; self.stamps = stamps; self.nsteps = nsteps
        self.opt = opt or {}
        self.stn = {}
    def stamp(self, name):
        if not self.stamps or name not in self.stamps: return
        i = self.stamps.index(name)
        self.a(f's_mem{"real" if self.opt.get("rt") else ""}time s[{S_ST + 2*i}:{S_ST + 2*i + 1}]')
    def setup(self):
        a = self.a
        for srd, ka in ((S_WQ, KA_WQ), (S_WK, KA_WK), (S_WV, KA_WV), (S_WO, KA_WO), (S_MEM0, KA_MEM0)):
            a(f's_load_dwordx2 s[{srd}:{srd+1}], s[0:1], {ka}')
        a('s_waitcnt lgkmcnt(0)')
        for srd in (S_WQ, S_WK, S_WV, S_WO):
            a(f's_mov_b32 s{srd+2}, 4718592\ns_mov_b32 s{srd+3}, 0x00020000')
        a(f's_mov_b32 s{S_MEM0+2}, 9216\ns_mov_b32 s{S_MEM0+3}, 0x00020000')
        L, N, G, T0, T1, T2, T3 = 12, 13, 14, 15, 16, 17, 18
        a(f'''
        v_and_b32 v{L}, 63, v0
        v_and_b32 v{N}, 15, v{L}
        v_lshrrev_b32 v{G}, 4, v{L}
        s_lshl_b32 s{S_WBASE}, s{S_W}, 15
        s_mul_i32 s{S_T2}, s{S_W}, 4096
        s_add_u32 s{S_MM0}, s{S_T2}, {L_M}
        s_add_u32 s{S_MLD}, s{S_T2}, {WS_MBUF - L_M}
        s_add_u32 s{S_MTG}, s{S_T2}, {WS_MBUF}
        v_lshlrev_b32 v{T0}, 4, v{L}
        v_add_u32 v{VWL}, s{S_WBASE}, v{T0}
        v_add_u32 v{VB}, {L_M}, v{T0}
        v_mov_b32 v{T0}, 0x88888888
        v_mov_b32 v{T1}, 0xdddddddd
        v_cmp_gt_u32 vcc, 8, v{N}
        v_cndmask_b32 v{IDX}, v{T1}, v{T0}, vcc
        ''')
        a(f'''
        s_mul_i32 s{S_T0}, s{S_W}, {XS}
        s_add_u32 s{S_T1}, s{S_T0}, {L_X}
        v_lshlrev_b32 v{T0}, 3, v{N}
        v_lshrrev_b32 v{T1}, 1, v{G}
        v_lshl_add_u32 v{T1}, v{T1}, 7, v{T0}
        v_and_b32 v{T2}, 1, v{G}
        v_lshl_add_u32 v{T1}, v{T2}, 2, v{T1}
        v_add_u32 v{VXW}, s{S_T1}, v{T1}
        ''')
        a(f'''
        v_bfe_u32 v{T0}, v{L}, 3, 1
        v_lshl_add_u32 v{T0}, v{G}, 2, v{T0}
        v_lshlrev_b32 v{T0}, 3, v{T0}
        v_bfe_u32 v{T1}, v{L}, 2, 1
        v_lshl_add_u32 v{T0}, v{T1}, 7, v{T0}
        v_and_b32 v{T1}, 1, v{L}
        v_mul_u32_u24 v{T1}, 320, v{T1}
        v_add_u32 v{T1}, v{T1}, v{T0}
        v_add_u32 v{VTR}, {L_X}, v{T1}
        v_bfe_u32 v{T2}, v{L}, 1, 1
        v_mul_u32_u24 v{T1}, 320, v{T2}
        v_add_u32 v{T1}, v{T1}, v{T0}
        v_add_u32 v{VTRK}, {L_X + 576}, v{T1}
        v_mul_u32_u24 v{T1}, {2*XS}, v{T2}
        v_add_u32 v{VTRZ}, v{T1}, v{VTR}
        ''')
        a(f'''
        s_lshl_b32 s{S_T0}, s{S_W}, 11
        s_add_u32 s{S_VXM}, s{S_T0}, {L_VX}
        s_add_u32 s{S_KXM}, s{S_T0}, {L_KX}
        s_add_u32 s{S_XVO}, s{S_T0}, {L_VX - L_M}
        v_lshl_add_u32 v{VVX}, v{L}, 2, s{S_VXM}
        v_min_u32 v{T0}, 39, v{L}
        v_lshlrev_b32 v{T0}, 7, v{T0}
        v_add_u32 v{VMT}, 120, v{T0}
        ''')
        a(f'''
        s_mul_i32 s{S_T2}, s{S_H}, {PSTRIDE}
        s_mul_i32 s{S_T1}, s{S_W}, 2304
        s_add_u32 s{S_T2}, s{S_T2}, s{S_T1}
        v_lshrrev_b32 v{T0}, 1, v{G}
        v_lshlrev_b32 v{T0}, 8, v{T0}
        v_lshl_add_u32 v{T0}, v{N}, 4, v{T0}
        v_and_b32 v{T1}, 1, v{G}
        v_lshl_add_u32 v{T0}, v{T1}, 3, v{T0}
        v_add_u32 v{VPST}, s{S_T2}, v{T0}
        ''')
        a(f'''
        s_lshl_b32 s{S_T0}, s{S_W}, 5
        s_add_u32 s{S_T0}, s{S_T0}, s{S_H}
        s_cmp_lt_u32 s{S_T0}, 72
        s_cselect_b32 s{S_HAS}, 1, 0
        s_lshl_b32 s{S_T0}, s{S_T0}, 7
        s_add_u32 s{S_MST}, s{S_T0}, {WS_MBUF}
        s_sub_u32 s{S_MST}, s{S_MST}, s{S_T2}
        s_add_u32 s{S_HIST}, s{S_MST}, {WS_MHIST + 9216 - WS_MBUF}
        s_mov_b32 s{S_T1}, {PSTRIDE}
        v_lshrrev_b32 v{T0}, 3, v{L}
        v_mul_lo_u32 v{T0}, v{T0}, s{S_T1}
        v_and_b32 v{T1}, 7, v{L}
        v_lshl_add_u32 v{T0}, v{T1}, 4, v{T0}
        v_add_u32 v{VRD}, s{S_T0}, v{T0}
        ''')
        for i in range(4):
            a(f's_mov_b32 s{S_RD+i}, {WS_PART + 8*i*PSTRIDE}')
        a(f'''
        s_mov_b32 s{S_PART}, {WS_PART}
        s_mov_b32 s{S_MSK}, 0x00ff00ff
        s_mov_b32 s{S_MSK+1}, 0
        s_mov_b32 s{S_LO}, -1
        s_mov_b32 s{S_LO+1}, 0
        s_mov_b32 s{S_C}, {hex(f32(128 ** -0.5 * 1.4426950408889634))}
        s_lshl_b32 s{S_T0}, s{S_H}, 13
        s_lshl_b32 s{S_T1}, s{S_W}, 11
        s_add_u32 s{S_T1}, s{S_T1}, s{S_T0}
        s_add_u32 s{S_KXS}, s{S_T1}, {WS_KP - L_M}
        s_add_u32 s{S_VXS}, s{S_T1}, {WS_VP - L_M}
        s_and_b32 s{S_T1}, s{S_W}, 1
        s_lshl_b32 s{S_T1}, s{S_T1}, 12
        s_add_u32 s{S_T0}, s{S_T0}, s{S_T1}
        s_lshr_b32 s{S_T1}, s{S_W}, 1
        s_mul_i32 s{S_T1}, s{S_T1}, {WS_VP - WS_KP}
        s_add_u32 s{S_T0}, s{S_T0}, s{S_T1}
        s_add_u32 s{S_TCH}, s{S_T0}, {WS_KP - 8*L_M}
        s_lshl_b32 s{S_T0}, s{S_H}, 2
        s_add_u32 s{S_T0}, s{S_T0}, s{S_W}
        s_lshl_b32 s{S_T1}, s{S_T0}, 10
        s_add_u32 s{S_VMS}, s{S_T1}, {WS_VM - L_M}
        s_lshl_b32 s{S_T1}, s{S_T0}, 9
        s_add_u32 s{S_KMS}, s{S_T1}, {WS_KM}
        s_sub_u32 s{S_KMS}, s{S_KMS}, s{S_T2}
        ''')
        a(f'''
        v_and_b32 v{T0}, 1, v{N}
        v_lshlrev_b32 v{T0}, 4, v{T0}
        v_mov_b32 v{T1}, 0x3f80
        v_lshlrev_b32 v{VBD}, v{T0}, v{T1}
        ''')
        for jj in range(4):
            m = (3 << (2 * jj)) * 0x00010001
            a(f's_mov_b32 s{S_SEL+2*jj}, {hex(m)}\ns_mov_b32 s{S_SEL+2*jj+1}, {hex(m)}')
        for jj in range(4):
            a(f'v_mov_b32 v{24+jj}, 0x3f003f00\nv_mov_b32 v{28+jj}, 0')
        a(f'''
        ds_write_b128 v{VB}, v[24:27] offset:{L_CHALF - L_M}
        ds_write_b128 v{VB}, v[28:31] offset:{L_CZERO - L_M}
        ''')
        for pi in range(4):
            a(f'buffer_store_dwordx2 v[28:29], v{VPST}, {WS}, s{S_PART} offen offset:{512*pi} sc1')
        lab = a.uid('Lni')
        a(f'''
        s_mov_b64 exec, s[{S_LO}:{S_LO+1}]
        buffer_store_dwordx2 v[28:29], v{VPST}, {WS}, s{S_PART} offen offset:2048 sc1
        s_mov_b64 exec, -1
        s_cmp_eq_u32 s{S_HAS}, 0
        s_cbranch_scc1 {lab}
        s_mov_b64 exec, s[{S_MSK}:{S_MSK+1}]
        buffer_store_dwordx2 v[28:29], v{VPST}, {WS}, s{S_MST} offen sc1
        s_mov_b64 exec, -1
        {lab}:
        s_waitcnt vmcnt(0) lgkmcnt(0)
        s_barrier
        ''')
        lab = a.uid('Lsg')
        a(f'''
        s_cmp_eq_u32 s{S_W}, 0
        s_cbranch_scc0 {lab}
        s_mov_b64 exec, 1
        v_mov_b32 v20, 1
        buffer_atomic_add v20, off, s[{S_DBG}:{S_DBG+3}], 0 offset:{D_INIT}
        s_mov_b64 exec, -1
        {lab}:
        ''')
        a.reset_counters()
    def load_weights(self):
        a = self.a
        L, N, G = 12, 13, 14
        A_, CC, T0, T1 = 15, 16, 17, 18
        VQ, VO, VZ, RQ, RO, RZ, RV = 20, 21, 22, 23, 24, 25, 26
        TMP = 32
        a(f'''
        v_lshrrev_b32 v{A_}, 2, v{N}
        v_and_b32 v{CC}, 3, v{L}
        v_lshrrev_b32 v{T0}, 2, v{L}
        v_lshlrev_b32 v{T0}, 13, v{T0}
        v_lshl_add_u32 v{VQ}, v{CC}, 4, v{T0}
        s_mov_b32 s{S_T0}, 1152
        v_lshrrev_b32 v{T0}, 3, v{L}
        v_mul_lo_u32 v{T0}, v{T0}, s{S_T0}
        v_and_b32 v{T1}, 7, v{L}
        v_lshl_add_u32 v{VO}, v{T1}, 4, v{T0}
        v_lshrrev_b32 v{T0}, 1, v{L}
        v_mul_lo_u32 v{T0}, v{T0}, s{S_T0}
        v_and_b32 v{T1}, 1, v{L}
        v_lshl_add_u32 v{VZ}, v{T1}, 4, v{T0}
        ''')
        a(f'''
        v_lshrrev_b32 v{T0}, 1, v{G}
        v_lshlrev_b32 v{T0}, 4, v{T0}
        v_and_b32 v{T1}, 1, v{G}
        v_lshl_add_u32 v{T0}, v{T1}, 2, v{T0}
        v_and_b32 v{T1}, 1, v{A_}
        v_lshl_add_u32 v{T0}, v{T1}, 3, v{T0}
        v_lshrrev_b32 v{T1}, 1, v{A_}
        v_add_u32 v{T0}, v{T0}, v{T1}
        v_lshlrev_b32 v{T0}, 6, v{T0}
        v_lshl_add_u32 v{T0}, v{CC}, 3, v{T0}
        v_add_u32 v{RV}, s{S_WBASE}, v{T0}
        ''')
        a(f'''
        v_lshl_add_u32 v{T0}, v{G}, 2, v{T1}
        v_lshlrev_b32 v{T0}, 6, v{T0}
        v_and_b32 v{T1}, 1, v{A_}
        v_lshl_add_u32 v{T0}, v{T1}, 5, v{T0}
        v_lshl_add_u32 v{T0}, v{CC}, 3, v{T0}
        v_add_u32 v{RQ}, s{S_WBASE}, v{T0}
        ''')
        a(f'''
        v_lshrrev_b32 v{T0}, 1, v{A_}
        v_lshlrev_b32 v{T0}, 4, v{T0}
        v_lshl_add_u32 v{T0}, v{G}, 1, v{T0}
        v_and_b32 v{T1}, 1, v{A_}
        v_lshlrev_b32 v{RO}, 7, v{T0}
        v_lshl_add_u32 v{RO}, v{T1}, 5, v{RO}
        v_lshl_add_u32 v{RO}, v{CC}, 3, v{RO}
        v_add_u32 v{RO}, s{S_WBASE}, v{RO}
        v_lshl_add_u32 v{T0}, v{T1}, 6, v{T0}
        v_lshlrev_b32 v{T0}, 5, v{T0}
        v_lshl_add_u32 v{T0}, v{CC}, 3, v{T0}
        v_add_u32 v{RZ}, s{S_WBASE}, v{T0}
        ''')
        a(f'''
        s_lshl_b32 s{S_T2}, s{S_H}, 8
        s_lshl_b32 s{S_T0}, s{S_W}, 6
        s_add_u32 s{S_T2}, s{S_T2}, s{S_T0}
        s_mul_i32 s{S_T3}, s{S_H}, {128*1152}
        s_mul_i32 s{S_T0}, s{S_W}, 288
        s_add_u32 s{S_T3}, s{S_T3}, s{S_T0}
        ''')
        def issue(i):
            d = ORDER[i]; slot = i % 8
            for x in range(4):
                a(f's_add_u32 m0, s{S_WBASE}, {slot*4096 + x*1024}')
                if d[0] in 'qkv':
                    srd = {'q': S_WQ, 'k': S_WK, 'v': S_WV}[d[0]]; v = VQ
                    a(f's_add_u32 s{S_T0}, s{S_T2}, {(64*d[1] + 16*x) * 8192}')
                elif d[0] == 'o':
                    srd = S_WO; v = VO
                    a(f's_add_u32 s{S_T0}, s{S_T3}, {(32*d[2] + 8*x) * 1152 + 128*d[1]}')
                else:
                    srd = S_WO; v = VZ
                    a(f's_add_u32 s{S_T0}, s{S_T3}, {32*x*1152 + 256}')
                a(f'buffer_load_dwordx4 v{v}, s[{srd}:{srd+3}], s{S_T0} offen lds', tag=('w', i))
        for i in range(8): issue(i)
        for i, d in enumerate(ORDER):
            slot = i % 8
            a.wait_vm(('w', i))
            for j, op in enumerate(ops_of(d)):
                if op in WREG: f, b = WREG[op]
                else: f, b = 'v', TMP + 8 * j
                for al in range(2):
                    for y in range(2):
                        if d[0] in 'qkv': v = RV; off = (32*al + 2*y) * 64 + 32*j
                        elif d[0] == 'o': v = RO; off = (8*al + y) * 128 + 64*j
                        else: v = RZ; off = (32*j + 8*al + y) * 32
                        a(f'ds_read_b64_tr_b16 {vr(b + 4*al + 2*y, 2, f)}, v{v} offset:{slot*4096 + off}')
            a.wait_lgkm()
            if d in LDS_DOUBLES:
                for k in range(4):
                    a(f'ds_write_b128 v{VWL}, {vr(TMP + 4*k, 4)} offset:{slot*4096 + k*1024}')
                a.wait_lgkm()
            if i + 8 < len(ORDER): issue(i + 8)
    def touch(self):
        T = Q(12) + 3
        return [f'v_lshlrev_b32 v{T}, 3, v{VB}', f's_mov_b32 m0, {L_X + 4672}', f's_mov_b64 exec, s[{S_LO}:{S_LO+1}]',
                f'buffer_load_dword v{T}, {WS}, s{S_TCH} offen sc1 lds', 's_mov_b64 exec, -1', f's_add_u32 s{S_TCH}, s{S_TCH}, {32*8192}']
    def kx_dma(self):
        return [f's_mov_b32 m0, s{S_KXM}', f's_nop 0', f'buffer_load_dwordx4 v{VB}, {WS}, s{S_KXS} offen sc1 lds',
                f'buffer_load_dwordx4 v{VB}, {WS}, s{S_KXS} offen offset:1024 sc1 lds', f's_add_u32 s{S_KXS}, s{S_KXS}, {32*8192}']
    def prep_p1(self, par):
        a = self.a
        for q, op in ((6, ('q', 0, 1)), (8, ('q', 1, 1))):
            for h in range(2): a(f'ds_read_b128 {q4(q+h)}, v{VWL} offset:{WLDS[op] + 1024*h}')
        for r in range(Q(2), Q(6)): a(f'v_mov_b32 v{r}, 0')
        for r in range(Q(11), Q(12)): a(f'v_mov_b32 v{r}, 0')
        a(f'v_mov_b32 v{Q(12)}, {-1 if par else 0}')
        a(f'v_add_u32 v{Q(10)}, s{S_XVO}, v{VB}')
    def first_m(self):
        a = self.a
        L, N, G = 12, 13, 14
        lj = a.uid('Lfj'); lp = a.uid('Lfp')
        if self.opt.get('sync'):
            lk = a.uid('Lkv')
            a(f"""
            v_and_b32 v15, 7, v{L}
            v_lshlrev_b32 v15, 5, v15
            s_mov_b32 s{S_SPIN}, 0
            {lk}:
            buffer_load_dword v16, v15, s[{S_DBG}:{S_DBG+3}], 0 offen offset:{D_MT(0)} sc1
            s_add_u32 s{S_SPIN}, s{S_SPIN}, 1
            s_cmp_gt_u32 s{S_SPIN}, 0x40000
            s_cbranch_scc1 L_chain_fail
            s_sleep 4
            s_waitcnt vmcnt(0)
            v_and_b32 v16, 0xff, v16
            v_cmp_ne_u32 vcc, 64, v16
            s_cbranch_vccnz {lk}
            """)
        for x in self.touch() + self.touch(): a(x)
        a(f"""
        s_cmp_ge_u32 s{S_W}, 2
        s_cbranch_scc1 {lj}
        v_and_b32 v15, 7, v{N}
        s_mov_b32 s{S_T0}, 1152
        v_mul_lo_u32 v15, v15, s{S_T0}
        v_lshrrev_b32 v16, 3, v{L}
        v_lshl_add_u32 v15, v16, 4, v15
        s_mul_i32 s{S_T0}, s{S_W}, 512
        s_mov_b32 m0, s{S_MM0}
        s_nop 0
        """)
        a(f'buffer_load_dwordx4 v15, s[{S_MEM0}:{S_MEM0+3}], s{S_T0} offen lds')
        for j in range(1, 5):
            a(f's_add_u32 m0, s{S_MM0}, {1024*j}\ns_add_u32 s{S_T0}, s{S_T0}, 128')
            a(f'buffer_load_dwordx4 v15, s[{S_MEM0}:{S_MEM0+3}], s{S_T0} offen lds')
        a(f"""
        s_mov_b32 s{S_SPIN}, 0
        {lp}:
        buffer_load_dword v15, off, s[{S_DBG}:{S_DBG+3}], 0 offset:{D_INIT} sc1
        s_add_u32 s{S_SPIN}, s{S_SPIN}, 1
        s_cmp_gt_u32 s{S_SPIN}, 0x40000
        s_cbranch_scc1 L_chain_fail
        s_waitcnt vmcnt(0)
        v_cmp_gt_u32 vcc, {self.opt.get('solo', 32)}, v15
        s_cbranch_vccnz {lp}
        {lj}:
        """)
        self.prep_p1(0)
        for x in self.kx_dma(): a(x)
        a(f"""
        s_mov_b32 s{S_STEP}, 0
        s_mov_b32 s{S_C1}, 0
        s_mov_b32 s{S_C2}, 0
        s_mov_b32 s{S_IOF}, 0xf0000000
        s_waitcnt vmcnt(0) lgkmcnt(0)
        """)
        a.reset_counters()
    def step(self, stf, par):
        a = self.a
        sfx = stf.replace(' ', '') + str(par)
        otag = 1 - par
        def rdM(q, ks): a(f'ds_read_b128 {q4(q)}, v{VB} offset:{1024*ks}', tag=('q', q))
        def rdC(q, off): a(f'ds_read_b128 {q4(q)}, v{VB} offset:{off - L_M}', tag=('q', q))
        def zero(q): rdC(q, L_CZERO)
        def rdW1(q, op, h): a(f'ds_read_b128 {q4(q+h)}, v{VWL} offset:{WLDS[op] + 1024*h}', tag=('q', q))
        def rdW(q, op): rdW1(q, op, 0); rdW1(q, op, 1)
        def rdKX(q, t, k): rdC(q, L_KX + (2*k + t) * 1024)
        def rdTR1(q, v, off, y): a(f'ds_read_b64_tr_b16 {vr(Q(q) + 2*y, 2)}, v{v} offset:{off + 16*y}', tag=('q', q))
        def rdTR(q, v, off): rdTR1(q, v, off, 0); rdTR1(q, v, off, 1)
        def wq(q): a.wait_lgkm(('q', q))
        def smf(acc, A, B): a(f'v_smfmac_f32_16x16x64_bf16 {q4(acc)}, {q4(A)}, {B}, v{IDX}')
        def mfma(acc, A, B, first): a(f'v_mfma_f32_16x16x32_bf16 {q4(acc)}, {q4(A)}, {q4(B)}, {"0" if first else q4(acc)}')
        def pack(q): return [f'v_cvt_pk_bf16_f32 v{Q(q)}, v{Q(q)}, v{Q(q)+1}', f'v_cvt_pk_bf16_f32 v{Q(q)+1}, v{Q(q)+2}, v{Q(q)+3}']
        def settag(r): return f'v_or_b32 v{r}, 1, v{r}' if otag else f'v_and_b32 v{r}, -2, v{r}'
        def do(x):
            if x is not None: x() if callable(x) else a(x)
        def run(fl, n):
            for _ in range(n):
                if fl: do(fl.pop(0))
        def halfsum(x, y):
            return ([f'v_permlane32_swap_b32 v{Q(x)+r}, v{Q(y)+r}' for r in range(4)] +
                    [f'v_add_f32 v{Q(x)+r}, v{Q(x)+r}, v{Q(y)+r}' for r in range(4)] + pack(x))
        def rdTRk(q, v, k): rdTR1(q, v, XS * k, 0); rdTR1(q, v, XS * k, 1)
        def chkop(A): return f'v_bitop3_b32 v{CHK}, v{CHK}, v{Q(A)}, v{Q(A)+2} bitop3:{"0x80" if par else "0xfe"}'
        a(f'L_b1{sfx}:')
        a('s_barrier   ; B1')
        self.stamp('B1')
        CHK = Q(12)
        rdM(0, 0); rdM(1, 1)
        a(f'ds_read_b128 {q4(10)}, v{Q(10)}', tag='xv')
        a(f's_mov_b32 m0, s{S_VXM}')
        gaps = {i: [] for i in range(40)}
        gaps[2] += [lambda: a.wait_lgkm('xv'), f'buffer_load_dwordx4 v{VB}, {WS}, s{S_VXS} offen sc1 lds']
        gaps[9] += [f'buffer_load_dwordx4 v{VB}, {WS}, s{S_VXS} offen offset:1024 sc1 lds', f's_mov_b32 m0, {L_X + 4672}']
        gaps[13] += [f'buffer_store_dwordx4 {q4(10)}, v{VB}, {WS}, s{S_IOF} offen sc1']
        gaps[17] += [f'v_lshlrev_b32 v{Q(12)+3}, 3, v{VB}']
        gaps[18] += [f's_mov_b64 exec, s[{S_LO}:{S_LO+1}]\nbuffer_load_dword v{Q(12)+3}, {WS}, s{S_TCH} offen sc1 lds\ns_mov_b64 exec, -1']
        for j, g in enumerate((21, 22, 25, 26)): gaps[g] += [f'v_mov_b32 v{Q(10)+j}, 0']
        gaps[29] += ['s_waitcnt vmcnt(4)']
        gaps[32] += [lambda: rdKX(6, 0, 0)]; gaps[33] += [lambda: rdKX(7, 1, 0)]; gaps[34] += [lambda: rdKX(8, 0, 1)]
        nxtw = {1: 3, 3: 5, 5: 7}
        for ks in range(9):
            A = ks % 2
            wq(A)
            for j, (X, t) in enumerate((('q', 0), ('q', 1), ('k', 0), ('k', 1))):
                i = 4 * ks + j
                l = (X, t, ks) in WLDS
                ws = 6 + 2 * t
                if l: wq(ws)
                smf(2 + j, A, q8(ws) if l else wreg((X, t, ks)))
                if l and ks in nxtw:
                    n = nxtw[ks]; Y = 'q' if ('q', t, n) in WLDS else 'k'
                    gaps[i + 1 + t] += [lambda ws=ws, op=(Y, t, n): rdW1(ws, op, 0)]
                    gaps[i + 2 + t] += [lambda ws=ws, op=(Y, t, n): rdW1(ws, op, 1)]
                if j == 3: rdM(A, (ks + 2) % 9 if ks < 7 else ks - 7)
                for x in gaps[i]: do(x)
                if j == 0 and ks >= 2: a(chkop(A))
        self.stamp('P1')
        def V(ks, A, nxt, mid=(), end=()):
            wq(A)
            for t in range(2):
                l = ('v', t, ks) in WLDS
                if l: wq(6 + 2 * t)
                smf(10 + t, A, q8(6 + 2 * t) if l else wreg(('v', t, ks)))
                if t == 0:
                    for x in mid: do(x)
            if nxt is not None: rdM(A, nxt)
            for x in end: do(x)
        chk = [f's_cbranch_vccz L_ok{sfx}'] + ([f's_cmp_eq_u32 s{S_STEP}, 0', f's_cbranch_scc1 L_ok{sfx}'] if par == 0 else []) + [f's_branch L_redo{sfx}', f'L_ok{sfx}:']
        if self.opt.get('noexch'): chk = []
        hq, hk = halfsum(2, 3), halfsum(4, 5)
        V(0, 1, None, mid=[lambda: rdKX(9, 1, 1), chkop(1)], end=[lambda: rdM(1, 2)] + hq[0:4])
        V(1, 0, None, mid=[chkop(0)] + hq[4:8], end=[lambda: rdM(0, 3)] + hq[8:10] + hk[0:2])
        V(2, 1, 4, mid=[lambda: a(f'ds_write2_b32 v{VXW}, v{Q(2)}, v{Q(2)+1} offset0:0 offset1:80', tag='x')] + hk[2:4],
          end=hk[4:10])
        V(3, 0, None, mid=[lambda: a(f'ds_write2_b32 v{VXW}, v{Q(4)}, v{Q(4)+1} offset0:144 offset1:224', tag='x'),
                           f'v_and_b32 v{CHK}, 1, v{CHK}'], end=[f'v_cmp_ne_u32 vcc, {par}, v{CHK}'])
        for x in chk: a(x)
        a(f'buffer_store_dwordx2 {vr(Q(4), 2)}, v{VPST}, {WS}, s{S_KMS} offen sc1')
        a(f's_add_u32 s{S_KMS}, s{S_KMS}, {32*2048}\ns_add_u32 s{S_VXS}, s{S_VXS}, {32*8192}\ns_add_u32 s{S_TCH}, s{S_TCH}, {32*8192}')
        a.wait_lgkm('x')
        a('s_barrier   ; B2')
        self.stamp('B2')
        ring = [6, 7, 8, 9]; QT = [2, 3, 5, 4]
        stream = []
        for k in range(4): stream += [('x', 0, k), ('x', 1, k)]
        for k in range(4): stream += [('m', k)]
        def rdop(i):
            q = ring[i % 4]; o = stream[i]
            if o[0] == 'x': rdKX(q, o[1], o[2])
            else: rdTRk(q, VTRK, o[1])
        rdTRk(QT[0], VTR, 0); rdTRk(QT[1], VTR, 1)
        V(4, 1, None, mid=[lambda: rdTRk(QT[2], VTR, 2)], end=[lambda: rdTRk(QT[3], VTR, 3)])
        MX, TT, NM = Q(4), Q(4) + 1, Q(4) + 2
        S = [Q(0) + r for r in range(4)] + [Q(1) + r for r in range(4)] + [Q(12) + r for r in range(4)]
        for i, o in enumerate(stream):
            k = o[-1]
            wq(ring[i % 4]); wq(QT[k])
            acc = o[1] if o[0] == 'x' else 12
            mfma(acc, ring[i % 4], QT[k], k == 0)
            if i + 4 < 12: rdop(i + 4)
            if i == 8: rdM(2, 5)
            if i == 9: rdM(3, 6)
            if i == 10: zero(5)
            if i == 11: rdW1(6, ('v', 0, 8), 0)
        self.stamp('S')
        V(5, 2, 7, mid=[lambda: rdW1(6, ('v', 0, 8), 1), lambda: rdW1(8, ('v', 1, 8), 0), f'v_max3_f32 v{MX}, v{S[0]}, v{S[1]}, v{S[2]}'],
          end=[lambda: rdW1(8, ('v', 1, 8), 1), f'v_max3_f32 v{MX}, v{MX}, v{S[3]}, v{S[4]}',
               f'v_max3_f32 v{MX}, v{MX}, v{S[5]}, v{S[6]}', f'v_max3_f32 v{TT}, v{S[9]}, v{S[10]}, v{S[11]}',
               f'v_max3_f32 v{MX}, v{MX}, v{S[7]}, v{S[8]}', f'v_max_f32 v{MX}, v{MX}, v{TT}', f'v_max_f32 v{TT}, v{MX}, v{TT}'])
        wq(3); smf(10, 3, wreg(('v', 0, 6)))
        a(f's_nop 0\nv_permlane16_swap_b32 v{MX}, v{TT}\nv_max_f32 v{MX}, v{MX}, v{TT}\nv_max_f32 v{TT}, v{MX}, v{TT}')
        smf(11, 3, wreg(('v', 1, 6))); rdM(3, 8)
        a(f'v_permlane32_swap_b32 v{MX}, v{TT}\nv_max_f32 v{MX}, v{MX}, v{TT}\nv_mul_f32_e64 v{NM}, -s{S_C}, v{MX}')
        f = lambda r: f'v_fma_f32 v{r}, v{r}, s{S_C}, v{NM}'
        e = lambda r: f'v_exp_f32 v{r}, v{r}'
        V(7, 2, None, mid=[f(r) for r in S[0:4]], end=[lambda: rdC(2, L_CHALF), 's_waitcnt vmcnt(3)'] + [f(r) for r in S[4:12]])
        def b1(y0):
            for y in range(y0, y0 + 2): a(f'ds_read2st64_b32 {vr(Q(6) + 2*y, 2)}, v{VVX} offset0:{2*y} offset1:{2*y + 1}', tag=('q', 6))
        V(8, 3, None, mid=[lambda: b1(0), e(S[0])], end=[lambda: b1(2), lambda: zero(3), lambda: zero(4)] + [e(r) for r in S[1:8]])
        a(f"""
        v_cvt_pk_bf16_f32 v{Q(0)}, v{Q(0)}, v{Q(0)+1}
        v_cvt_pk_bf16_f32 v{Q(0)+1}, v{Q(0)+2}, v{Q(0)+3}
        v_cvt_pk_bf16_f32 v{Q(0)+2}, v{Q(1)}, v{Q(1)+1}
        v_cvt_pk_bf16_f32 v{Q(0)+3}, v{Q(1)+2}, v{Q(1)+3}
        v_exp_f32 v{S[8]}, v{S[8]}
        v_exp_f32 v{S[9]}, v{S[9]}
        """)
        wq(3)
        mfma(1, 0, 2, True)
        a(e(S[10]))
        mfma(1, 0, 2, False)
        a(e(S[11]))
        for r in range(2): a(f'v_cvt_pk_bf16_f32 v{Q(8 + r//2) + r%2}, v{Q(10)+r}, v{Q(11)+r}')
        smf(5, 0, q8(6))
        a(f'v_cvt_pk_bf16_f32 v{Q(3)}, v{S[8]}, v{S[9]}\nv_cvt_pk_bf16_f32 v{Q(3)+2}, v{S[10]}, v{S[11]}')
        for r in range(2, 4): a(f'v_cvt_pk_bf16_f32 v{Q(8 + r//2) + r%2}, v{Q(10)+r}, v{Q(11)+r}')
        mfma(1, 3, 2, False)
        a(f'ds_write2st64_b32 v{VVX}, v{Q(8)}, v{Q(8)+1} offset0:0 offset1:1', tag='xvw')
        smf(5, 3, q8(8))
        self.stamp('PV')
        a(f'ds_write2st64_b32 v{VVX}, v{Q(9)}, v{Q(9)+1} offset0:2 offset1:3', tag='xvw')
        rdW(2, ('z', 0)); rdW(10, ('z', 1)); zero(12)
        for r in range(4): a(f'v_rcp_f32 v{Q(1)+r}, v{Q(1)+r}')
        for r in range(4): a(f'v_mul_f32 v{Q(5)+r}, v{Q(5)+r}, v{Q(1)+r}')
        for x in pack(5): a(x)
        a(f'ds_write2_b32 v{VXW}, v{Q(5)}, v{Q(5)+1} offset0:0 offset1:80', tag='x')
        if par == 1: a(f's_cmp_eq_u32 s{S_STEP}, {self.nsteps - 1}')
        for r in range(4): a(f'v_mov_b32 v{Q(5)+r}, 0')
        a.wait_lgkm('x')
        a('s_barrier   ; B4')
        self.stamp('B4')
        if par == 1: a(f's_cbranch_scc1 L_chain_last{stf.replace(" ", "")}')
        rdTRk(6, VTR, 0); rdTRk(0, VTRZ, 0); rdTRk(1, VTRZ, 1)
        def post(acc, pi):
            return pack(acc) + [settag(Q(acc)), f'buffer_store_dwordx2 {vr(Q(acc), 2)}, v{VPST}, {WS}, s{S_PART} offen offset:{512*pi} {stf}']
        Z = Q(12)
        zp = [f'v_permlane32_swap_b32 v{Z}, v{Z+2}', f'v_permlane32_swap_b32 v{Z+1}, v{Z+3}',
              f'v_add_f32 v{Z}, v{Z}, v{Z+2}', f'v_add_f32 v{Z+1}, v{Z+1}, v{Z+3}',
              f'v_cvt_pk_bf16_f32 v{Z}, v{Z}, v{Z+1}', f'v_mov_b32 v{Z+1}, v{Z}',
              f'v_permlane32_swap_b32 v{Z}, v{Z+1}', settag(Z),
              f's_mov_b64 exec, s[{S_LO}:{S_LO+1}]\nbuffer_store_dwordx2 {vr(Z, 2)}, v{VPST}, {WS}, s{S_PART} offen offset:2048 {stf}\ns_mov_b64 exec, -1']
        accs = [4, 5, 0, 1]
        p0, p1, p2 = post(4, 0), post(5, 1), post(0, 2)
        W_ = lambda pi, k: wreg(('o', pi, k))
        seq = [(4, 6, W_(0, 0)), (5, 6, W_(1, 0)), (12, 0, q8(2)), (12, 1, q8(10)),
               (4, 8, W_(0, 2)), (4, 9, W_(0, 3)), (4, 7, q8(2)),
               (5, 8, W_(1, 2)), (5, 9, W_(1, 3)), (5, 7, q8(10)),
               (0, 6, W_(2, 0)), (0, 7, W_(2, 1)), (0, 8, W_(2, 2)), (0, 9, q8(2)),
               (1, 6, W_(3, 0)), (1, 7, W_(3, 1)), (1, 8, W_(3, 2)), (1, 9, q8(10))]
        need = {0: [6], 2: [0], 3: [1], 4: [8], 5: [9], 6: [7, 2], 9: [10], 10: [0], 13: [2], 14: [1], 17: [10]}
        g = {0: [lambda: rdTRk(8, VTR, 2)], 1: [lambda: rdTRk(9, VTR, 3)], 2: [lambda: rdTRk(7, VTR, 1), lambda: rdW1(2, ('o', 0, 1), 0)],
             3: [lambda: rdW1(2, ('o', 0, 1), 1)], 4: [lambda: rdW(10, ('o', 1, 1))], 5: [lambda: zero(0), zp[0]], 6: [lambda: zero(1), zp[1]],
             7: [lambda: rdW1(2, ('o', 2, 3), 0)] + zp[2:4], 8: [lambda: rdW1(2, ('o', 2, 3), 1)] + zp[4:6], 9: p0[0:2],
             10: [lambda: rdW(10, ('o', 3, 3)), zp[6]], 11: [p0[2], zp[7]], 12: [p0[3], zp[8], p1[0]], 13: p1[1:3], 14: [p1[3]],
             16: [p2[0]], 17: p2[1:]}
        for i, (acc, A, B) in enumerate(seq):
            for q in need.get(i, []): wq(q)
            smf(acc, A, B)
            for x in g.get(i, []): do(x)
        a(f's_mov_b32 s{S_IOF}, s{S_VMS}\ns_add_u32 s{S_VMS}, s{S_VMS}, {32*4096}\ns_mov_b32 s{S_SPIN}, 0\ns_cmp_eq_u32 s{S_HAS}, 0')
        for x in post(1, 3): a(x)
        self.stamp('Wo')
        def delay(n):
            while n > 0:
                a(f's_nop {min(n, 16) - 1}'); n -= 16
        tb = '0x2a' if otag else '0xa8'
        if self.opt.get('noexch'):
            for x in self.kx_dma(): a(x)
            self.prep_p1(otag)
            a(f's_waitcnt vmcnt(0)\ns_branch L_next{sfx}')
        a(f's_cbranch_scc1 L_mpoll{sfx}')
        RA, RB = [6, 7, 8, 9], [4, 5, 10, 11]
        T = Q(12) + 2
        def rload(R, M):
            for i in range(4):
                if M: a(f's_mov_b64 exec, s[{M+2*i}:{M+2*i+1}]')
                a(f'buffer_load_dwordx4 {q4(R[i])}, v{VRD}, {WS}, s{S_RD+i} offen sc1')
            if M: a('s_mov_b64 exec, -1')
        def rcheck(R, M, nxt, w):
            for i in range(4):
                a(f's_waitcnt vmcnt({w + 3 - i})')
                mfma(3, R[i], 2, i == 0)
                a(f'v_bitop3_b32 v{T + i%2}, v{Q(R[i])}, v{Q(R[i])+2}, 1 bitop3:{tb}')
                a(f'v_cmp_ne_u32 s[{M+2*i}:{M+2*i+1}], 0, v{T + i%2}')
            a(f"""
            s_or_b64 vcc, s[{M}:{M+1}], s[{M+2}:{M+3}]
            s_or_b64 vcc, vcc, s[{M+4}:{M+5}]
            s_or_b64 vcc, vcc, s[{M+6}:{M+7}]
            s_cbranch_scc0 {nxt}
            """)
        delay(self.opt.get('d1', 0))
        rload(RA, None)
        for jj in range(4): a(f'v_cndmask_b32 v{Q(2)+jj}, 0, v{VBD}, s[{S_SEL+2*jj}:{S_SEL+2*jj+1}]')
        if self.opt.get('rsingle'):
            a(f'L_rpoll{sfx}:')
            rcheck(RA, S_MA, f'L_rgot{sfx}', 0)
            rload(RA, S_MA)
        else:
            delay(self.opt.get('g1', 16))
            rload(RB, None)
            a(f'L_rpoll{sfx}:')
            rcheck(RA, S_MA, f'L_rgot{sfx}', 4)
            rload(RA, S_MA)
            rcheck(RB, S_MB, f'L_rgot{sfx}', 4)
            rload(RB, S_MB)
        a(f"""
        s_add_u32 s{S_SPIN}, s{S_SPIN}, 1
        s_cmp_gt_u32 s{S_SPIN}, 0x40000
        s_cbranch_scc0 L_rpoll{sfx}
        s_branch L_chain_fail
        L_rgot{sfx}:
        """)
        self.stamp('rgot')
        D = Q(3)
        a(f"""
        v_permlane32_swap_b32 v{D}, v{D+2}
        v_permlane32_swap_b32 v{D+1}, v{D+3}
        v_add_f32 v{D}, v{D}, v{D+2}
        v_add_f32 v{D+1}, v{D+1}, v{D+3}
        v_cvt_pk_bf16_f32 v{D}, v{D}, v{D+1}
        v_mov_b32 v{D+1}, v{D}
        s_add_u32 s{S_C1}, s{S_C1}, s{S_SPIN}
        s_mov_b32 s{S_SPIN}, 0
        v_permlane32_swap_b32 v{D}, v{D+1}
        {settag(D)}
        s_mov_b64 exec, s[{S_MSK}:{S_MSK+1}]
        buffer_store_dwordx2 {vr(D, 2)}, v{VPST}, {WS}, s{S_MST} offen {stf}
        """)
        if self.debug:
            a(f'buffer_store_dwordx2 {vr(D, 2)}, v{VPST}, {WS}, s{S_HIST} offen')
        a(f's_mov_b64 exec, -1\ns_waitcnt vmcnt({2 if self.debug else 1})')
        a(f'L_mpoll{sfx}:')
        for x in self.kx_dma(): a(x)
        a(f'L_mre{sfx}:')
        self.prep_p1(otag)
        delay(self.opt.get('d2', 0))
        a(f's_add_u32 s{S_T0}, s{S_MLD}, 1024\ns_cmp_ge_u32 s{S_W}, 2\ns_cbranch_scc1 L_w3{sfx}')
        TG = [Q(12) + 1, Q(12) + 2]
        T = Q(12) + 3
        def mround(t):
            a(f'buffer_load_dword v{TG[t]}, v{VMT}, {WS}, s{S_MTG} offen sc1')
            a(f's_mov_b32 m0, s{S_MM0}\ns_nop 0')
            a(f'buffer_load_dwordx4 v{VB}, {WS}, s{S_MLD} offen sc1 lds')
            a(f's_add_u32 m0, s{S_MM0}, 1024\ns_nop 0')
            for j in range(4): a(f'buffer_load_dwordx4 v{VB}, {WS}, s{S_T0} offen offset:{1024*j} sc1 lds')
        def mcheck(t, w):
            a(f"""
            s_waitcnt vmcnt({w})
            v_and_b32 v{T}, 1, v{TG[t]}
            v_cmp_ne_u32 vcc, {otag}, v{T}
            s_cbranch_vccz L_mgot{sfx}
            """)
        if self.opt.get('force_redo'):
            a(f's_cmp_eq_u32 s{S_IOF}, 0xf0000000\ns_cbranch_scc1 L_fr{sfx}')
            mround(0); a(f's_waitcnt vmcnt(0)\ns_branch L_next{sfx}\nL_fr{sfx}:')
        if self.opt.get('msingle'):
            a(f'L_mloop{sfx}:')
            mround(0)
            mcheck(0, 5)
        else:
            mround(0)
            delay(self.opt.get('g2', 24))
            a(f'L_mloop{sfx}:')
            mround(1)
            mcheck(0, 11)
            mround(0)
            mcheck(1, 11)
        a(f"""
        s_add_u32 s{S_SPIN}, s{S_SPIN}, 1
        s_cmp_gt_u32 s{S_SPIN}, 0x40000
        s_cbranch_scc0 L_mloop{sfx}
        s_branch L_chain_fail
        """)
        a(f"""
        L_redo{stf.replace(" ", "") + str(1 - par)}:
        s_waitcnt vmcnt(0) lgkmcnt(0)
        s_barrier
        s_sub_u32 s{S_STEP}, s{S_STEP}, 1
        s_sub_u32 s{S_HIST}, s{S_HIST}, 9216
        s_mov_b32 s{S_SPIN}, 0
        s_mov_b32 s{S_IOF}, 0xf0000000
        s_branch L_mre{sfx}
        L_w3{sfx}:
        """)
        if self.opt.get('sync') and par == 1:
            a(f"""
            s_and_b32 s{S_T0}, s{S_STEP}, 3
            s_lshl_b32 s{S_T1}, s{S_W}, 2
            s_add_u32 s{S_T0}, s{S_T0}, s{S_T1}
            s_cmp_eq_u32 s{S_T0}, 13
            s_cbranch_scc0 L_ns{sfx}
            s_cmp_eq_u32 s{S_IOF}, 0xf0000000
            s_cbranch_scc1 L_ns{sfx}
            s_cmp_lt_u32 s{S_STEP}, 5
            s_cbranch_scc1 L_ns{sfx}
            s_sub_u32 s{S_T0}, s{S_STEP}, 5
            """)
            self.sig_group()
            a(f'L_ns{sfx}:')
        a(f"""
        s_waitcnt vmcnt(0)
        s_branch L_next{sfx}
        L_mgot{sfx}:
        s_add_u32 s{S_C2}, s{S_C2}, s{S_SPIN}
        s_waitcnt vmcnt({0 if self.opt.get('msingle') else 6})
        L_next{sfx}:
        """)
        self.stamp('mgot')
        if self.stamps and par == 0:
            lab = a.uid('Lst')
            a(f's_cmp_eq_u32 s{S_STEP}, 20\ns_cbranch_scc0 {lab}\ns_waitcnt lgkmcnt(0)')
            a(f's_lshl_b32 s{S_T0}, s{S_H}, 2\ns_add_u32 s{S_T0}, s{S_T0}, s{S_W}\ns_lshl_b32 s{S_T0}, s{S_T0}, 7\ns_add_u32 s{S_T0}, s{S_T0}, {WS_STAMP}')
            a(f's_mov_b64 exec, 1')
            for i in range(len(self.stamps)):
                a(f'v_mov_b32 v59, s{S_ST+2*i}\nbuffer_store_dword v59, off, {WS}, s{S_T0} offset:{4*i}')
            for i, r in enumerate((S_C1, S_C2)):
                a(f'v_mov_b32 v59, s{r}\nbuffer_store_dword v59, off, {WS}, s{S_T0} offset:{64+4*i}')
            a(f's_mov_b64 exec, -1\n{lab}:')
        a(f"""
        s_add_u32 s{S_STEP}, s{S_STEP}, 1
        s_add_u32 s{S_HIST}, s{S_HIST}, 9216
        s_waitcnt lgkmcnt(0)
        """)
        a.reset_counters()
    def sig_group(self):
        self.a(f"""
        s_lshr_b32 s{S_T1}, s{S_T0}, 3
        s_lshl_b32 s{S_T1}, s{S_T1}, 5
        s_and_b32 s{S_T0}, s{S_T0}, 4
        s_add_u32 s{S_T0}, s{S_T0}, s{S_T1}
        s_mov_b64 exec, 1
        v_mov_b32 v{Q(1)+3}, 1
        buffer_atomic_add v{Q(1)+3}, off, s[{S_DBG}:{S_DBG+3}], s{S_T0} offset:{D_SG(0)}
        s_mov_b64 exec, -1
        """)
    def loop(self, stf):
        a = self.a
        sfx = stf.replace(' ', '')
        a(f'L_step{sfx}:')
        self.step(stf, 0)
        self.step(stf, 1)
        a(f's_branch L_step{sfx}')
        a(f'L_chain_last{sfx}:')
        a(f"""
        v_add_u32 v{Q(8)}, s{S_XVO}, v{VB}
        ds_read_b128 {q4(8)}, v{Q(8)}
        s_waitcnt lgkmcnt(0)
        buffer_store_dwordx4 {q4(8)}, v{VB}, {WS}, s{S_VMS} offen sc1
        s_waitcnt vmcnt(0)
        """)
        if self.opt.get('sync'):
            a(f's_barrier\ns_cmp_eq_u32 s{S_W}, 3\ns_cbranch_scc0 L_chain_done\ns_mov_b32 s{S_T0}, 60')
            self.sig_group()
            a('s_waitcnt vmcnt(0)')
        a('s_branch L_chain_done')
```

```python
from asmlib import *
from layout import *

S_WS = 4; S_DBG = 8
S_MT, S_W, S_GRP = 12, 13, 14
S_X = 16
S_A = 20; S_B = 24
S_PQ, S_PK, S_PV, S_PG, S_PU = 28, 30, 32, 34, 36
S_T0, S_T1, S_T2, S_T3 = 38, 39, 40, 41
S_FB, S_FC, S_FOFF, S_FSTEP, S_FSLOT = 42, 43, 44, 45, 46
S_CB, S_CC = 47, 48
S_BLK, S_EOFF = 49, 50
S_GW = 52
S_FADV = 57
S_PEND = 58
S_RSL = 56
WS = f's[{S_WS}:{S_WS+3}]'
NSLOT = 8
V_LQ, V_LG, V_F = 1, 2, 3
V_R = 4
V_RC = 8
V_EK, V_EV, V_EH, V_SG = 12, 13, 14, 16
V_T = 18
V_AF = 32
V_XX = 64
V_ACC = 96
V_E = 224
def xf(t, ks):
    n = t * 36 + ks
    return vr(4 * n, 4, 'a') if n < 64 else vr(V_XX + 4 * (n - 64), 4)
def acc(t, ct): return V_ACC + 16 * (4 * t + ct)

class Gemm1:
    def __init__(self, a, stf='', nblk=6, sync=False):
        self.a = a; self.stf = stf; self.nblk = nblk; self.sync = sync
    def blockid(self, dst, i):
        self.a(f's_mul_i32 s{dst}, s{i}, 28\ns_add_u32 s{dst}, s{dst}, s{S_GRP}')
    def fetch_setup(self):
        a = self.a
        lg = a.uid('Lg'); le = a.uid('Le')
        self.blockid(S_T0, S_FB)
        a(f'''
        s_cmp_ge_u32 s{S_T0}, 96
        s_cbranch_scc1 {lg}
        s_lshr_b32 s{S_T1}, s{S_T0}, 5
        s_cmp_eq_u32 s{S_T1}, 0
        s_cselect_b64 s[{S_A}:{S_A+1}], s[{S_PK}:{S_PK+1}], s[{S_PV}:{S_PV+1}]
        s_cmp_eq_u32 s{S_T1}, 2
        s_cselect_b64 s[{S_A}:{S_A+1}], s[{S_PQ}:{S_PQ+1}], s[{S_A}:{S_A+1}]
        s_mov_b32 s{S_A+2}, 4718592
        s_and_b32 s{S_T0}, s{S_T0}, 31
        s_lshl_b32 s{S_FOFF}, s{S_T0}, 8
        s_lshl_b32 s{S_T1}, s{S_W}, 17
        s_add_u32 s{S_FOFF}, s{S_FOFF}, s{S_T1}
        s_mov_b32 s{S_FSTEP}, {4*8192}
        s_mov_b32 s{S_FADV}, {13*4*8192}
        v_mov_b32 v{V_F}, v{V_LQ}
        s_branch {le}
        {lg}:
        s_cmp_lt_u32 s{S_W}, 2
        s_cselect_b64 s[{S_A}:{S_A+1}], s[{S_PG}:{S_PG+1}], s[{S_PU}:{S_PU+1}]
        s_mov_b32 s{S_A+2}, 5308416
        s_sub_u32 s{S_T0}, s{S_T0}, 96
        s_lshl_b32 s{S_FOFF}, s{S_T0}, 7
        s_and_b32 s{S_T1}, s{S_W}, 1
        s_mul_i32 s{S_T1}, s{S_T1}, {32*9216}
        s_add_u32 s{S_FOFF}, s{S_FOFF}, s{S_T1}
        s_mov_b32 s{S_FSTEP}, {8*9216}
        s_mov_b32 s{S_FADV}, {5*8*9216}
        v_mov_b32 v{V_F}, v{V_LG}
        {le}:
        ''')
    def fetch_items(self):
        it = []
        for j in range(4):
            it.append(f's_add_u32 m0, s{S_FSLOT}, {1024*j}\n' + (f's_add_u32 s{S_FOFF}, s{S_FOFF}, s{S_FSTEP}' if j else 's_nop 0') +
                      f'\nbuffer_load_dwordx4 v{V_F}, s[{S_A}:{S_A+3}], s{S_FOFF} offen lds')
        it.append(f's_add_u32 s{S_FOFF}, s{S_FOFF}, s{S_FADV}\ns_add_u32 s{S_FSLOT}, s{S_FSLOT}, 16384\ns_and_b32 s{S_FSLOT}, s{S_FSLOT}, {NSLOT*16384 - 1}')
        return it
    def fetch_next_block(self):
        a = self.a
        a(f's_add_u32 s{S_FB}, s{S_FB}, 1')
        self.fetch_setup()
        a(f's_cmp_lt_u32 s{S_FB}, {self.nblk}\ns_cselect_b32 s{S_A+2}, s{S_A+2}, 0')
    def setup(self):
        a = self.a
        for r, ka in ((S_X, KA_X), (S_PQ, KA_WQ), (S_PK, KA_WK), (S_PV, KA_WV), (S_PG, KA_WG), (S_PU, KA_WU), (S_GW, KA_GW)):
            a(f's_load_dwordx2 s[{r}:{r+1}], s[0:1], {ka}')
        a(f'''
        s_waitcnt lgkmcnt(0)
        s_mov_b32 s{S_X+2}, 2359296
        s_mov_b32 s{S_X+3}, 0x00020000
        s_mov_b32 s{S_GW+2}, 1152
        s_mov_b32 s{S_GW+3}, 0x00020000
        s_mov_b64 s[{S_A}:{S_A+1}], s[{S_PK}:{S_PK+1}]
        s_mov_b32 s{S_A+2}, 0
        s_mov_b32 s{S_A+3}, 0x00020000
        ''')
        L, T0, T1, T2, T3 = V_T, V_T + 1, V_T + 2, V_T + 3, V_T + 4
        a(f'''
        v_and_b32 v{L}, 63, v0
        v_lshrrev_b32 v{T0}, 4, v{L}
        v_and_b32 v{T1}, 15, v{L}
        v_lshlrev_b32 v{T2}, 2, v{T0}
        v_xor_b32 v{T1}, v{T1}, v{T2}
        v_lshlrev_b32 v{T1}, 4, v{T1}
        v_lshl_add_u32 v{V_LQ}, v{T0}, 13, v{T1}
        v_lshrrev_b32 v{T0}, 3, v{L}
        v_and_b32 v{T1}, 7, v{L}
        v_bfe_u32 v{T2}, v{L}, 4, 1
        v_lshlrev_b32 v{T2}, 2, v{T2}
        v_xor_b32 v{T1}, v{T1}, v{T2}
        v_lshlrev_b32 v{T1}, 4, v{T1}
        v_mul_u32_u24 v{T0}, 9216, v{T0}
        v_add_u32 v{V_LG}, v{T0}, v{T1}
        s_lshl_b32 s{S_FSLOT}, s{S_W}, 12
        s_mov_b32 s{S_FB}, 0
        s_mov_b32 s{S_FC}, 0
        ''')
        self.fetch_setup()
        for x in self.fetch_items(): a(x)
        VO = V_ACC
        for j in range(18):
            a(f'''
            v_add_u32 v{T0}, {64*j}, v{L}
            v_mul_u32_u24 v{T1}, 911, v{T0}
            v_lshrrev_b32 v{T1}, 16, v{T1}
            v_bfe_u32 v{T2}, v{T1}, 1, 3
            v_xor_b32 v{T0}, v{T0}, v{T2}
            v_lshlrev_b32 v{VO + j}, 4, v{T0}
            ''')
        a(f'''
        s_lshl_b32 s{S_T0}, s{S_MT}, 2
        s_add_u32 s{S_T0}, s{S_T0}, s{S_W}
        s_mul_i32 s{S_T0}, s{S_T0}, {64*1152}
        s_mul_i32 s{S_T1}, s{S_W}, 36864
        s_add_u32 s{S_T1}, s{S_T1}, 16384
        ''')
        def xdma(r):
            for j in range(18):
                a(f's_add_u32 m0, s{S_T1}, {(r % 2) * 18432 + 1024*j}')
                a(f's_add_u32 s{S_T2}, s{S_T0}, {r * 18432}' if j == 0 else 's_nop 0')
                a(f'buffer_load_dwordx4 v{VO + j}, s[{S_X}:{S_X+3}], s{S_T2} offen lds', tag=('x', r))
        xdma(0); xdma(1)
        XR = V_ACC + 20
        a(f'''
        v_and_b32 v{T0}, 15, v{L}
        v_lshrrev_b32 v{T2}, 1, v{T0}
        v_mul_u32_u24 v{T0}, 1152, v{T0}
        v_add_u32 v{T0}, s{S_T1}, v{T0}
        v_lshrrev_b32 v{T1}, 5, v{L}
        v_xor_b32 v{T2}, v{T2}, v{T1}
        ''')
        for m in range(4):
            a(f'v_xor_b32 v{T3}, {2*m}, v{T2}\nv_lshl_add_u32 v{XR + m}, v{T3}, 4, v{T0}')
        a(f'v_lshlrev_b32 v{T2}, 4, v{T1}')
        for r in range(4):
            a.wait_vm(('x', r))
            a(f's_mov_b32 exec_lo, {"0xffff0000" if r % 2 else "0x0000ffff"}\ns_mov_b32 exec_hi, {"0xffff0000" if r % 2 else "0x0000ffff"}')
            for ks in range(36):
                a(f'ds_read_b128 {xf(r // 2, ks)}, v{XR + ks % 4} offset:{(r % 2) * 18432 + 128 * (ks // 4)}')
                if ks % 12 == 11: a('s_waitcnt lgkmcnt(6)')
            a('s_mov_b64 exec, -1\ns_waitcnt lgkmcnt(0)')
            if r + 2 < 4: xdma(r + 2)
        a('s_barrier')
        for c in range(5):
            for x in self.fetch_items(): a(x)
        a.reset_counters()
        a(f'''
        v_and_b32 v{T0}, 31, v{L}
        v_lshrrev_b32 v{T1}, 5, v{L}
        v_bfe_u32 v{T2}, v{T0}, 2, 1
        v_lshlrev_b32 v{V_EK}, 10, v{T2}
        v_lshrrev_b32 v{T2}, 3, v{T0}
        v_and_b32 v{T3}, 3, v{T0}
        v_lshl_add_u32 v{T2}, v{T2}, 2, v{T3}
        v_lshl_add_u32 v{T2}, v{T1}, 4, v{T2}
        v_lshl_add_u32 v{V_EK}, v{T2}, 4, v{V_EK}
        v_lshrrev_b32 v{T2}, 4, v{T0}
        v_lshl_add_u32 v{T2}, v{T2}, 2, v{T3}
        v_lshlrev_b32 v{V_EV}, 8, v{T2}
        v_bfe_u32 v{T2}, v{T0}, 2, 2
        v_lshl_add_u32 v{V_EV}, v{T2}, 6, v{V_EV}
        v_lshl_add_u32 v{V_EV}, v{T1}, 4, v{V_EV}
        v_lshlrev_b32 v{V_EH}, 4, v{L}
        ''')
        a.reset_counters()
    def gate(self):
        a = self.a
        L, T0, T1, T2, T3 = V_T, V_T + 1, V_T + 2, V_T + 3, V_T + 4
        LG = 131072
        a(f'''
        s_lshl_b32 s{S_T0}, s{S_W}, 11
        s_add_u32 m0, s{S_T0}, {LG}
        v_lshrrev_b32 v{T1}, 5, v{L}
        v_lshl_add_u32 v{T1}, v{T1}, 4, s{S_T0}
        buffer_load_dwordx4 v{V_EH}, s[{S_GW}:{S_GW+3}], 0 offen lds
        buffer_load_dwordx4 v{V_EH}, s[{S_GW}:{S_GW+3}], 0 offen offset:1024 lds
        v_add_u32 v{T1}, {LG}, v{T1}
        s_waitcnt vmcnt(0)
        ''')
        gf = lambda ks: vr(V_ACC + 4*ks if ks < 32 else V_AF + 4*(ks-32), 4)
        for ks in range(36):
            a(f'ds_read_b128 {gf(ks)}, v{T1} offset:{32*ks}')
            if ks % 12 == 11: a('s_waitcnt lgkmcnt(0)')
        for t in range(2):
            for ks in range(36):
                a(f'v_mfma_f32_32x32x16_bf16 {vr(V_E + 16*t, 16)}, {gf(ks)}, {xf(t, ks)}, {vr(V_E + 16*t, 16) if ks else 0}')
        for t in range(2):
            a(f'''
            v_mul_f32 v{T2}, 0x3fb8aa3b, v{V_E + 16*t}
            v_exp_f32 v{T3}, v{T2}
            v_exp_f32_e64 v{T2}, -v{T2}
            v_add_f32 v{T3}, 1.0, v{T3}
            v_add_f32 v{T2}, 1.0, v{T2}
            v_rcp_f32 v{V_SG + t}, v{T3}
            v_rcp_f32 v{V_T + 5 + t}, v{T2}
            ''')
        lab = a.uid('Lng')
        a(f'''
        s_cmp_eq_u32 s{S_GRP}, 0
        s_cbranch_scc0 {lab}
        s_lshl_b32 s{S_T0}, s{S_MT}, 2
        s_add_u32 s{S_T0}, s{S_T0}, s{S_W}
        s_lshl_b32 s{S_T0}, s{S_T0}, 8
        s_add_u32 s{S_T0}, s{S_T0}, {WS_G}
        v_and_b32 v{T0}, 31, v{L}
        v_lshlrev_b32 v{T0}, 2, v{T0}
        buffer_store_dword v{V_T + 5}, v{T0}, {WS}, s{S_T0} offen {self.stf}
        buffer_store_dword v{V_T + 6}, v{T0}, {WS}, s{S_T0} offen offset:128 {self.stf}
        s_waitcnt vmcnt(0)
        {lab}:
        ''')
        a.reset_counters()
    def signal(self):
        a = self.a
        lab = a.uid('Lsig')
        a(f'''
        s_cmp_eq_u32 s{S_W}, 0
        s_cbranch_scc0 {lab}
        s_mov_b64 exec, 1
        v_mov_b32 v{V_T + 7}, s{S_PEND}
        s_lshl_b32 s{S_T3}, s{S_MT}, 5
        buffer_atomic_add v{V_T + 7}, off, s[{S_DBG}:{S_DBG+3}], s{S_T3} offset:{D_MT(0)}
        s_mov_b64 exec, -1
        {lab}:
        s_mov_b32 s{S_PEND}, 0
        ''')
    def read_bases(self, glu):
        a = self.a
        L, A_, T0, T1 = V_T, V_T + 1, V_T + 2, V_T + 3
        a(f'''
        v_bfe_u32 v{A_}, v{L}, 2, 2
        v_lshrrev_b32 v{T0}, 5, v{L}
        v_lshl_add_u32 v{T0}, v{T0}, 3, v{A_}
        v_lshlrev_b32 v{T0}, {7 if glu else 8}, v{T0}
        v_bfe_u32 v{T1}, v{L}, 4, 1
        v_lshl_add_u32 v{T0}, v{T1}, 5, v{T0}
        v_and_b32 v{T1}, 3, v{L}
        v_lshl_add_u32 v{T0}, v{T1}, 3, v{T0}
        ''')
        if glu: a(f'v_lshrrev_b32 v{A_}, 1, v{A_}')
        for ct in range(4):
            a(f'v_xor_b32 v{T1}, {ct % 2 if glu else ct}, v{A_}')
            a(f'v_lshl_add_u32 v{V_R + ct}, v{T1}, 6, v{T0}')
            if glu and ct >= 2: a(f'v_add_u32 v{V_R + ct}, 8192, v{V_R + ct}')
    def block(self, glu):
        a = self.a
        rs = 128 if glu else 256
        def rd(u, st, i):
            ct, y = i // 2, i % 2
            a(f'ds_read_b64_tr_b16 {vr(V_AF + 16*st + 4*ct + 2*y, 2)}, v{V_RC + ct} offset:{(16*u + 4*y) * rs}', tag=('af', st))
        def newslot():
            return [f'v_add_u32 v{V_RC + ct}, s{S_RSL}, v{V_R + ct}' for ct in range(4)]
        for x in newslot(): a(x)
        for i in range(8): rd(0, 0, i)
        n = 0
        for c in range(9):
            for u in range(4):
                ks = 4 * c + u
                st = n % 2
                side = []
                if u == 0:
                    side = [f's_waitcnt vmcnt({(16 + 8) if c < 5 else 16})\ns_barrier'] + self.fetch_items()
                    side.append(f's_add_u32 s{S_RSL}, s{S_RSL}, 16384\ns_and_b32 s{S_RSL}, s{S_RSL}, {NSLOT*16384 - 1}')
                if u == 1 and c == 2: side = [self.fetch_next_block]
                if u == 1 and c == 5 and self.sync: side = [self.signal]
                a.wait_lgkm(('af', st))
                for i in range(8):
                    ct, t = i // 2, i % 2
                    d = vr(acc(t, ct), 16)
                    a(f'v_mfma_f32_32x32x16_bf16 {d}, {vr(V_AF + 16*st + 4*ct, 4)}, {xf(t, ks)}, {d if ks else 0}')
                    if ks < 35: rd((u + 1) % 4, 1 - st, i)
                    if u == 2 and i % 2 == 1 and c < 8: a(newslot()[i // 2])
                    if side:
                        x = side.pop(0)
                        x() if callable(x) else a(x)
                n += 1
        a.reset_counters()
    def epilogue(self, kind):
        a = self.a
        k = 0
        for t in range(2):
            for ct in range(2 if kind == 'h' else 4):
                D = acc(t, ct)
                if kind == 'h':
                    U = acc(t, ct + 2)
                    for i in range(16): a(f'v_mul_f32 v{D+i}, v{D+i}, v{U+i}')
                    for i in range(16): a(f'v_mul_f32 v{D+i}, v{D+i}, v{V_SG + t}')
                for q in range(2):
                    e = V_E + 4 * (k % 8); k += 1
                    for r in range(4): a(f'v_cvt_pk_bf16_f32 v{e+r}, v{D + 4*q + r}, v{D + 4*q + r + 8}')
                    if kind == 'kq': v = V_EK; off = 2048 * ct + 512 * q
                    elif kind == 'v': v = V_EV; off = 2048 * ct + 32 * q
                    else: v = V_EH; off = 2048 * ct + 1024 * q
                    so = S_EOFF + (1 if off >= 4096 else 0) if kind != 'h' else S_EOFF
                    a(f'buffer_store_dwordx4 {vr(e, 4)}, v{v}, {WS}, s{so} offen offset:{off % 4096} {self.stf}')
            if t == 0:
                step = 288 * 1024 if kind == 'h' else 32 * 8192
                a(f's_add_u32 s{S_EOFF}, s{S_EOFF}, {step}\ns_add_u32 s{S_EOFF+1}, s{S_EOFF+1}, {step}')
    def main(self, after_block=None):
        a = self.a
        a(f's_mov_b32 s{S_CB}, 0\ns_mov_b32 s{S_RSL}, 0\ns_waitcnt vmcnt(0)\ns_barrier')
        a(f's_mov_b32 s{S_PEND}, 0')
        a('L_g1_blk:')
        a(f's_cmp_eq_u32 s{S_CB}, 3\ns_cbranch_scc0 L_g1_ng')
        self.gate()
        a('L_g1_ng:')
        self.blockid(S_BLK, S_CB)
        a(f's_cmp_ge_u32 s{S_BLK}, 96\ns_cbranch_scc1 L_g1_glu')
        self.read_bases(False)
        self.block(False)
        a(f'''
        s_lshl_b32 s{S_T0}, s{S_MT}, 2
        s_add_u32 s{S_T0}, s{S_T0}, s{S_W}
        s_lshl_b32 s{S_T0}, s{S_T0}, 19
        s_and_b32 s{S_T1}, s{S_BLK}, 31
        s_lshl_b32 s{S_T1}, s{S_T1}, 13
        s_add_u32 s{S_T0}, s{S_T0}, s{S_T1}
        s_lshr_b32 s{S_T1}, s{S_BLK}, 5
        s_cmp_eq_u32 s{S_T1}, 2
        s_cselect_b32 s{S_T2}, {WS_QP}, {WS_KP}
        s_cmp_eq_u32 s{S_T1}, 1
        s_cselect_b32 s{S_T2}, {WS_VP}, s{S_T2}
        s_add_u32 s{S_EOFF}, s{S_T0}, s{S_T2}
        s_add_u32 s{S_EOFF+1}, s{S_EOFF}, 4096
        s_cmp_eq_u32 s{S_T1}, 1
        s_cbranch_scc1 L_g1_v
        ''')
        self.epilogue('kq')
        a('s_branch L_g1_next\nL_g1_v:')
        self.epilogue('v')
        a('s_branch L_g1_next\nL_g1_glu:')
        self.read_bases(True)
        self.block(True)
        a(f'''
        s_lshl_b32 s{S_T0}, s{S_MT}, 2
        s_add_u32 s{S_T0}, s{S_T0}, s{S_W}
        s_mul_i32 s{S_T0}, s{S_T0}, {2*288*1024}
        s_sub_u32 s{S_T1}, s{S_BLK}, 96
        s_lshl_b32 s{S_T1}, s{S_T1}, 12
        s_add_u32 s{S_T0}, s{S_T0}, s{S_T1}
        s_add_u32 s{S_EOFF}, s{S_T0}, {WS_H}
        ''')
        self.epilogue('h')
        a('L_g1_next:')
        if self.sync:
            a(f'''
            s_mov_b32 s{S_PEND}, 1
            s_cmp_ge_u32 s{S_BLK}, 64
            s_cselect_b32 s{S_PEND}, 0x100, s{S_PEND}
            s_cmp_ge_u32 s{S_BLK}, 96
            s_cselect_b32 s{S_PEND}, 0x10000, s{S_PEND}
            s_cmp_eq_u32 s{S_CB}, 2
            s_cbranch_scc1 L_g1_now
            s_cmp_eq_u32 s{S_CB}, {self.nblk - 1}
            s_cbranch_scc0 L_g1_later
            L_g1_now:
            s_waitcnt vmcnt(0)
            s_barrier
            ''')
            self.signal()
            a('L_g1_later:')
        a(f's_add_u32 s{S_CB}, s{S_CB}, 1\ns_cmp_lt_u32 s{S_CB}, {self.nblk}\ns_cbranch_scc1 L_g1_blk')
```

```python
MB = 1 << 20
WS_QP = 0
WS_KP = 16 * MB
WS_VP = 32 * MB
WS_H = 48 * MB
WS_O = 72 * MB
WS_KM = 96 * MB
WS_VM = 101 * MB
WS_PART = 112 * MB
WS_MBUF = 113 * MB
WS_MHIST = 114 * MB
WS_STAMP = 115 * MB
WS_G = 116 * MB
WS_BP = 117 * MB
WS_FLAG = 123 * MB
WS_SIZE = 256 * MB
PSTRIDE = 73 * 128
KA_X, KA_MEM0, KA_WQ, KA_WK, KA_WV, KA_WO = 0, 8, 16, 24, 32, 40
KA_WG, KA_WU, KA_WD, KA_GW, KA_OUT, KA_DBG, KA_WS = 64, 72, 80, 88, 96, 104, 112
D_TK = 0
D_OVF = 4
D_INIT = 8
D_AQ = 12
def D_MT(mt): return 32 * mt + 16
def D_SG(j): return 32 * (j // 2) + 20 + 4 * (j % 2)
```

```python
import sys
from asmlib import *
from common import *
import gemm1, chain4, att, outg
NAME = 'gated_mix__memory_aug_recurrent_mem_tr__glu_gated_bilinear__prompt'
K = NAME + '_kernel'
args = sys.argv[2:]
opt = {x.split('=')[0]: int(x.split('=')[1]) for x in args if '=' in x}
hdr = open('cdna_kernels/' + NAME + '.s.ref').read().split('\n')
hdr = [l for l in hdr if l.startswith(';') and '@launch' not in l]
S_XCD, S_SLOT, S_IDX = 98, 99, 100
DBG = 's[8:11]'
a = Asm()
a.raw('\n'.join(hdr) + '\n; @launch grid=(256,1,1) block=(256,1,1) lds=163840\n.amdgcn_target "amdgcn-amd-amdhsa--gfx950"\n.text')
header(K, a, 256)
def stamp(i):
    if opt.get('st'):
        lab = a.uid('Lstp')
        a(f'''
        s_cmp_eq_u32 s13, 0
        s_cbranch_scc0 {lab}
        s_memrealtime s[94:95]
        s_lshl_b32 s96, s{S_SLOT}, 6
        s_add_u32 s96, s96, {WS_STAMP + 4*i}
        s_waitcnt lgkmcnt(0)
        v_mov_b32 v63, s94
        s_mov_b64 exec, 1
        buffer_store_dword v63, off, s[4:7], s96
        s_mov_b64 exec, -1
        {lab}:
        ''')
def wait_word(soff, shift, val, tmpv, fail='L_fail'):
    lab = a.uid('Lw')
    a(f'''
    s_mov_b32 s97, 0
    {lab}:
    buffer_load_dword v{tmpv}, off, {DBG}, s{soff} sc1
    s_add_u32 s97, s97, 1
    s_cmp_gt_u32 s97, 0x20000
    s_cbranch_scc1 {fail}
    s_waitcnt vmcnt(0)
    v_bfe_u32 v{tmpv}, v{tmpv}, {shift}, 8
    v_cmp_eq_u32 vcc, {val}, v{tmpv}
    s_cbranch_vccnz {lab}_ok
    s_sleep 8
    s_branch {lab}
    {lab}_ok:
    ''')
def sg_off(dst, seg):
    a(f's_lshr_b32 s{dst}, s{seg}, 3\ns_lshl_b32 s{dst}, s{dst}, 5\ns_and_b32 s97, s{seg}, 4\ns_add_u32 s{dst}, s{dst}, s97\ns_add_u32 s{dst}, s{dst}, {D_SG(0)}')
def signal(soff, val, tmpv):
    lab = a.uid('Lsg')
    a(f'''
    s_waitcnt vmcnt(0)
    s_barrier
    s_cmp_eq_u32 s13, 0
    s_cbranch_scc0 {lab}
    s_mov_b64 exec, 1
    v_mov_b32 v{tmpv}, {val}
    buffer_atomic_add v{tmpv}, off, {DBG}, s{soff}
    s_mov_b64 exec, -1
    {lab}:
    ''')
a(f'''
s_getreg_b32 s{S_XCD}, hwreg(HW_REG_XCC_ID)
s_and_b32 s{S_XCD}, s{S_XCD}, 7
''')
if opt.get('fake'):
    a(f's_lshr_b32 s20, s2, 4\ns_cmp_eq_u32 s20, 3\ns_cselect_b32 s{S_XCD}, 5, s{S_XCD}')
a(f'''
s_cmp_eq_u32 s13, 0
s_cbranch_scc0 L_role_wait
s_lshl_b32 s20, s{S_XCD}, 5
s_mov_b64 exec, 1
v_mov_b32 v1, 1
buffer_atomic_add v1, off, {DBG}, s20 offset:{D_TK} sc0
s_waitcnt vmcnt(0)
v_readfirstlane_b32 s21, v1
s_add_u32 s{S_SLOT}, s20, s21
s_cmp_lt_u32 s21, 32
s_cbranch_scc1 L_role_pub
v_mov_b32 v1, 1
buffer_atomic_add v1, off, {DBG}, 0 offset:{D_OVF} sc0
s_waitcnt vmcnt(0)
v_readfirstlane_b32 s22, v1
s_mov_b32 s23, 0
L_role_all:
s_add_u32 s23, s23, 1
s_cmp_gt_u32 s23, 0x20000
s_cbranch_scc1 L_fail
s_mov_b32 s24, 0
''')
for x in range(8): a(f'buffer_load_dword v{2+x}, off, {DBG}, 0 offset:{D_TK + 32*x} sc1')
a('s_waitcnt vmcnt(0)')
for x in range(8): a(f'v_readfirstlane_b32 s{30+x}, v{2+x}')
for x in range(8): a(f's_add_u32 s24, s24, s{30+x}')
a('s_cmp_lt_u32 s24, 256\ns_cbranch_scc1 L_role_all')
for x in range(8):
    a(f'''
    s_min_u32 s25, s{30+x}, 32
    s_sub_u32 s26, 32, s25
    s_add_u32 s{S_SLOT}, s25, {32*x}
    s_add_u32 s{S_SLOT}, s{S_SLOT}, s22
    s_cmp_lt_u32 s22, s26
    s_cbranch_scc1 L_role_pub
    s_sub_u32 s22, s22, s26
    ''')
a(f'''
s_branch L_fail
L_role_pub:
v_mov_b32 v1, s{S_SLOT}
v_mov_b32 v2, 0
ds_write_b32 v2, v1
s_waitcnt lgkmcnt(0)
s_mov_b64 exec, -1
L_role_wait:
s_barrier
v_mov_b32 v2, 0
ds_read_b32 v1, v2
s_waitcnt lgkmcnt(0)
v_readfirstlane_b32 s{S_SLOT}, v1
s_and_b32 s{S_SLOT}, s{S_SLOT}, 255
s_barrier
''')
stamp(0)
a(f'''
s_cmp_lt_u32 s{S_SLOT}, 32
s_cbranch_scc0 L_worker
s_mov_b32 s{chain4.S_H}, s{S_SLOT}
''')
a.reset_counters()
copt = {'msingle': 1, 'rsingle': 1, 'd1': 64, 'd2': 48, 'sync': 1}; copt.update(opt)
c = chain4.Chain(a, opt=copt)
c.setup(); c.load_weights()
stamp(1)
c.first_m()
a('L_mode:')
a(f's_mov_b32 s{chain4.S_T2}, 0')
for x in range(8): a(f'buffer_load_dword v{chain4.Q(0)+x}, off, {DBG}, 0 offset:{D_TK + 32*x} sc1')
a('s_waitcnt vmcnt(0)')
for x in range(8): a(f'v_readfirstlane_b32 s{chain4.S_T0}, v{chain4.Q(0)+x}\ns_add_u32 s{chain4.S_T2}, s{chain4.S_T2}, s{chain4.S_T0}' + (f'\ns_mov_b32 s{chain4.S_T3}, s{chain4.S_T0}' if x == 0 else ''))
a(f'''
s_cmp_ge_u32 s{chain4.S_T3}, 32
s_cbranch_scc1 L_mode_fast
s_cmp_lt_u32 s{chain4.S_T2}, 256
s_cbranch_scc0 L_stepsc1
s_add_u32 s{chain4.S_SPIN}, s{chain4.S_SPIN}, 1
s_cmp_gt_u32 s{chain4.S_SPIN}, 0x60000
s_cbranch_scc0 L_mode
s_branch L_fail
L_mode_fast:
''')
stamp(2)
a.reset_counters()
c.loop('')
c.loop('sc1')
a('L_chain_done:')
stamp(3)
a('L_chain_fail:\nL_fail:\ns_endpgm')
a(f'''
L_worker:
s_sub_u32 s{S_IDX}, s{S_SLOT}, 32
s_and_b32 s{gemm1.S_MT}, s{S_IDX}, 7
s_lshr_b32 s{gemm1.S_GRP}, s{S_IDX}, 3
''')
g = gemm1.Gemm1(a, stf='sc1', sync=True); g.setup()
stamp(1)
g.main()
stamp(2)
RH, RO = 12, opt.get('ro', 8)
a(f's_barrier\ns_cmp_lt_u32 s{S_IDX}, {18*RH}\ns_cbranch_scc0 L_att')
def split18():
    a(f's_mul_i32 s{outg.S_SEG}, s{S_IDX}, 3641\ns_lshr_b32 s{outg.S_SEG}, s{outg.S_SEG}, 16\ns_mul_i32 s{outg.S_CT}, s{outg.S_SEG}, 18\ns_sub_u32 s{outg.S_CT}, s{S_IDX}, s{outg.S_CT}')
split18()
o = outg.Out(a, 'h', ldf='sc1', stf='sc1'); o.setup()
a('L_down_loop:')
a(f's_lshr_b32 s30, s{outg.S_SEG}, 3\ns_lshl_b32 s30, s30, 5\ns_add_u32 s30, s30, {D_MT(0)}')
wait_word(30, 16, 72, outg.V_T + 2)
o.task()
sg_off(30, outg.S_SEG)
signal(30, 0x10000, outg.V_T + 2)
a(f's_add_u32 s{outg.S_SEG}, s{outg.S_SEG}, {RH}\ns_cmp_lt_u32 s{outg.S_SEG}, 64\ns_cbranch_scc1 L_down_loop')
stamp(3)
a(f's_cmp_lt_u32 s{S_IDX}, {18*RO}\ns_cbranch_scc0 L_att')
split18()
o = outg.Out(a, 'o', ldf='sc1'); o.setup()
stamp(4)
a('L_out_loop:')
sg_off(30, outg.S_SEG)
wait_word(30, 16, 72, outg.V_T + 2)
wait_word(30, 8, 32, outg.V_T + 2)
o.task()
a(f's_add_u32 s{outg.S_SEG}, s{outg.S_SEG}, {RO}\ns_cmp_lt_u32 s{outg.S_SEG}, 64\ns_cbranch_scc1 L_out_loop')
a('s_waitcnt vmcnt(0)')
stamp(5)
a('s_endpgm')
NA = 224 - 18 * RO
a(f'L_att:')
t = att.Att(a, ldf='sc1', stf='sc1'); t.setup()
a(f's_sub_u32 s60, s{S_IDX}, {18*RO}')
a('L_att_loop:')
a(f'''
s_lshr_b32 s{att.S_SEG}, s60, 3
s_and_b32 s{att.S_HEAD}, s60, 7
s_lshl_b32 s{att.S_HEAD}, s{att.S_HEAD}, 2
s_add_u32 s{att.S_HEAD}, s{att.S_HEAD}, s13
s_lshr_b32 s61, s{att.S_SEG}, 3
s_lshl_b32 s61, s61, 5
s_add_u32 s61, s61, {D_MT(0)}
''')
wait_word(61, 8, 32, att.V_T)
sg_off(61, att.S_SEG)
wait_word(61, 0, 32, att.V_T)
t.task()
signal(61, 0x100, att.V_T)
a(f's_add_u32 s60, s60, {NA}\ns_cmp_lt_u32 s60, 512\ns_cbranch_scc1 L_att_loop')
stamp(5)
a('s_endpgm')
a.hoist()
out = a.finish() + '.section .rodata,"a"\n.p2align 6\n' + descriptor(K)
open(sys.argv[1], 'w').write(out)
print(out.count('\n'), 'lines', len(out), 'bytes')
```

```python
import re

def regs_of(tok):
    tok = tok.strip()
    tok = tok.lstrip('-')
    if tok.startswith('abs(') or tok.startswith('|'):
        tok = tok.replace('abs(', '').replace(')', '').replace('|', '')
    m = re.fullmatch(r'([vas])\[(\d+):(\d+)\]', tok)
    if m:
        return [(m.group(1), i) for i in range(int(m.group(2)), int(m.group(3)) + 1)]
    m = re.fullmatch(r'([vas])(\d+)', tok)
    if m:
        return [(m.group(1), int(m.group(2)))]
    if tok == 'vcc':
        return [('s', 'vcc')]
    if tok in ('exec', 'exec_lo', 'exec_hi'):
        return [('s', 'exec')]
    if tok == 'm0':
        return [('s', 'm0')]
    return []

TRANS = ('v_exp_f32', 'v_log_f32', 'v_rcp_f32', 'v_rsq_f32', 'v_sqrt_f32', 'v_sin_f32', 'v_cos_f32', 'v_rcp_iflag_f32')

class Ins:
    def __init__(self, text):
        self.text = text
        t = text.split(';')[0].strip()
        self.is_label = t.endswith(':')
        self.is_dir = t.startswith('.') or t == ''
        self.op = '' if (self.is_label or self.is_dir) else t.split()[0]
        rest = t[len(self.op):].strip() if self.op else ''
        ops = [o.strip() for o in rest.split(',')] if rest else []
        if ops:
            last = ops[-1].split()
            ops[-1] = last[0] if last else ''
            self.mods = last[1:]
        else:
            self.mods = []
        self.ops = ops
        op = self.op
        self.kind = 'other'
        self.w = []; self.r = []
        self.passes = 0
        self.srcC = []
        R = lambda i: regs_of(ops[i]) if i < len(ops) else []
        if op.startswith('v_mfma') or op.startswith('v_smfmac'):
            self.kind = 'mfma'
            self.passes = 8 if '32x32' in op else 4
            self.w = R(0)
            if op.startswith('v_smfmac'):
                self.srcC = R(0); self.ab = R(1) + R(2) + R(3)
            else:
                self.srcC = R(3); self.ab = R(1) + R(2)
            self.r = self.ab + self.srcC
        elif op.startswith('v_'):
            self.kind = 'valu'
            if op.startswith('v_permlane') and 'swap' in op:
                self.w = R(0) + R(1); self.r = R(0) + R(1)
            elif op.startswith('v_cmp'):
                self.w = R(0); self.r = sum((R(i) for i in range(1, len(ops))), [])
            elif op.startswith('v_readfirstlane') or op.startswith('v_readlane'):
                self.w = R(0); self.r = sum((R(i) for i in range(1, len(ops))), [])
            elif op.startswith('v_add_co') or op.startswith('v_addc_co') or op.startswith('v_sub_co'):
                self.w = R(0) + R(1); self.r = sum((R(i) for i in range(2, len(ops))), [])
            else:
                self.w = R(0); self.r = sum((R(i) for i in range(1, len(ops))), [])
                if op.startswith('v_fmac') or op.startswith('v_dot2c') or op.startswith('v_writelane'):
                    self.r += R(0)
                if op.startswith('v_cndmask') and len(ops) == 3:
                    self.r += [('s', 'vcc')]
        elif op.startswith('ds_'):
            self.kind = 'ds'
            if op.startswith('ds_read') or op.startswith('ds_bpermute') or op.startswith('ds_permute') or op.startswith('ds_swizzle'):
                self.w = R(0); self.r = sum((R(i) for i in range(1, len(ops))), [])
            else:
                self.r = sum((R(i) for i in range(0, len(ops))), [])
        elif op.startswith('buffer_') or op.startswith('global_'):
            self.kind = 'vmem'
            self.lds = 'lds' in self.mods
            if op in ('buffer_inv', 'buffer_wbl2'):
                pass
            elif 'load' in op and not self.lds:
                self.w = R(0); self.r = sum((R(i) for i in range(1, len(ops))), [])
            elif 'atomic' in op and 'sc0' in self.mods:
                self.w = R(0); self.r = sum((R(i) for i in range(0, len(ops))), [])
            else:
                self.r = sum((R(i) for i in range(0, len(ops))), [])
                if self.lds: self.r += [('s', 'm0')]
        elif op.startswith('s_'):
            self.kind = 'salu'
            if op in ('s_nop', 's_waitcnt', 's_barrier', 's_branch', 's_endpgm', 's_setprio', 's_sleep') or op.startswith('s_cbranch') or op.startswith('s_cmp') or op.startswith('s_bitcmp'):
                self.r = sum((R(i) for i in range(0, len(ops))), [])
            else:
                self.w = R(0); self.r = sum((R(i) for i in range(1, len(ops))), [])
        self.dpp = any(m.startswith('row_') or m.startswith('quad_perm') or m.startswith('wave_') for m in self.mods) or op.endswith('_dpp')
    def states(self):
        if self.is_label or self.is_dir: return 0
        if self.op == 's_nop': return int(self.ops[0], 0) + 1
        return 1

def need(prod, cons):
    n = 0
    pw = set(prod.w);
    cr = set(cons.r); cw = set(cons.w)
    vw = set(x for x in pw if x[0] in 'va')
    sw = set(x for x in pw if x[0] == 's')
    if prod.kind == 'valu':
        if cons.kind == 'mfma' and vw & cr: n = max(n, 2)
        if cons.kind == 'valu':
            if cons.op.startswith('v_permlane') and vw & cr: n = max(n, 2)
            if cons.dpp and vw & cr: n = max(n, 2)
            if (cons.op.startswith('v_readfirstlane') or cons.op.startswith('v_readlane')) and vw & cr: n = max(n, 1)
            if prod.op.split('_e')[0] in TRANS or prod.op in TRANS:
                if vw & cr and cons.op not in TRANS: n = max(n, 1)
            if sw & cr: n = max(n, 2)
            if sw & cr and (cons.op.startswith('v_readlane') or cons.op.startswith('v_writelane')): n = max(n, 4)
        if cons.kind == 'vmem' and sw & cr: n = max(n, 5)
        if cons.kind == 'salu' and sw & cr and not cons.op.startswith('s_cbranch'): n = max(n, 1)
    if prod.kind == 'mfma':
        p = prod.passes
        full = {4: 8, 8: 12}[p]; ovl = {4: 6, 8: 10}[p]; war = {4: 3, 8: 7}[p]
        if cons.kind == 'mfma':
            if pw & set(cons.ab): n = max(n, full)
            if pw & set(cons.srcC):
                if not (prod.w == cons.srcC and prod.op == cons.op): n = max(n, ovl)
            elif pw & cw and prod.w != cons.w:
                n = max(n, ovl)
        elif cons.kind in ('valu', 'ds', 'vmem'):
            if pw & (cr | cw): n = max(n, full)
            if cons.kind == 'valu' and set(prod.srcC) & cw: n = max(n, war)
    if prod.kind == 'vmem' and 'store' in prod.op and ('x4' in prod.op or 'x3' in prod.op):
        data = set(regs_of(prod.ops[0])) if prod.op.startswith('buffer') else set(regs_of(prod.ops[1]))
        if data & cw: n = max(n, 2 if cons.kind == 'valu' else 1)
    if prod.kind == 'salu' and ('s', 'm0') in pw and cons.kind == 'vmem' and getattr(cons, 'lds', False):
        n = max(n, 1)
    return n

class Asm:
    def __init__(self):
        self.lines = []
        self.lgkm = []
        self.vm = []
        self.nops = 0
        self.log = []
        self._uid = 0
    def raw(self, text):
        for t in text.split('\n'):
            self.lines.append(t)
    def __call__(self, text, tag=None):
        for t in text.strip('\n').split('\n'):
            t = t.strip()
            if not t: continue
            self.lines.append('    ' + t if not t.endswith(':') else t)
            op = t.split()[0]
            if op.startswith('ds_'):
                self.lgkm.append(tag)
            elif op.startswith('buffer_') or op.startswith('global_'):
                if op not in ('buffer_inv',):
                    self.vm.append(tag)
    def label(self, name): self.lines.append(name + ':')
    def uid(self, p='L'):
        self._uid += 1; return f'{p}_{self._uid}'
    def wait_lgkm(self, tag=None):
        if tag is None:
            n = 0
        else:
            idx = max(i for i, t in enumerate(self.lgkm) if t == tag) if tag in self.lgkm else None
            if idx is None: return
            n = len(self.lgkm) - 1 - idx
        assert n <= 15, n
        self.lines.append(f'    s_waitcnt lgkmcnt({n})')
        self.lgkm = self.lgkm[len(self.lgkm) - n:] if n else []
    def wait_vm(self, tag=None):
        if tag is None:
            n = 0
        else:
            idx = max(i for i, t in enumerate(self.vm) if t == tag) if tag in self.vm else None
            if idx is None: return
            n = len(self.vm) - 1 - idx
        assert n <= 63, n
        self.lines.append(f'    s_waitcnt vmcnt({n})')
        self.vm = self.vm[len(self.vm) - n:] if n else []
    def reset_counters(self):
        self.lgkm = []; self.vm = []
    def hoist(self):
        ins = [Ins(l) for l in self.lines]
        changed = True
        def movable(x):
            if x.is_label or x.is_dir: return False
            if x.kind not in ('ds', 'vmem', 'salu'): return False
            if x.op in ('s_barrier', 's_branch', 's_endpgm', 's_nop', 's_memtime', 's_memrealtime') or x.op.startswith('s_cbranch'): return False
            if ('s', 'exec') in x.w or ('s', 'exec') in x.r or ('s', 'vcc') in x.w or ('s', 'vcc') in x.r: return False
            return True
        i = 0
        n = len(ins)
        last_mfma = -100
        for i in range(n):
            x = ins[i]
            if x.kind == 'mfma': last_mfma = i; continue
            if not movable(x): continue
            j = i
            if x.op == 's_waitcnt' and sum(1 for y in ins[last_mfma+1:i] if y.kind == 'valu') > 1: continue
            while j - 1 > last_mfma and ins[j-1].kind == 'valu' and i - last_mfma <= 6:
                v = ins[j-1]
                if set(x.r) & set(v.w) or set(x.w) & (set(v.r) | set(v.w)): break
                if x.kind in ('ds', 'vmem'):
                    pass
                ins[j-1], ins[j] = ins[j], ins[j-1]; j -= 1
        self.lines = [x.text for x in ins]
    def finish(self, verbose=False):
        out = []; hist = []
        for ln in self.lines:
            ins = Ins(ln)
            if ins.is_label or ins.is_dir:
                out.append(ln); continue
            dist = 0; req = 0
            mdist = 0
            seen = False
            for p in reversed(hist):
                nd = need(p, ins)
                d = max(dist, mdist) if p.kind == 'mfma' else dist
                if nd > d: req = max(req, nd - d)
                dist += p.states()
                if p.kind == 'mfma': mdist += p.passes - 1; seen = True
                elif not seen: mdist += p.states()
                if dist >= 13: break
            if req:
                self.nops += req
                if verbose: self.log.append(f'nop {req} before: {ln.strip()}')
                k = req
                while k > 0:
                    c = min(k, 16)
                    nl = f'    s_nop {c-1}'
                    out.append(nl); hist.append(Ins(nl)); k -= c
            out.append(ln); hist.append(ins)
            if len(hist) > 40: hist = hist[-20:]
        return '\n'.join(out) + '\n'

def vr(b, n=1, f='v'):
    return f'{f}{b}' if n == 1 else f'{f}[{b}:{b+n-1}]'
```

```python
from asmlib import *
from layout import *
import struct
def f32(x): return struct.unpack('<I', struct.pack('<f', x))[0]
S_WS = 4
S_SEG, S_W, S_HEAD = 12, 13, 14
S_T0, S_T1, S_T2, S_T3 = 16, 17, 18, 19
S_LB = 20
S_C = 21
S_MK = 24
WS = f's[{S_WS}:{S_WS+3}]'
V_L16, V_RV, V_RM, V_RK, V_GA, V_OA = 1, 2, 3, 4, 5, 6
V_G = 8
V_T = 10
V_NEG = 7
V_K = 20
V_Q = 52
V_KM = 84
V_S = 100
V_A = 124
V_D = 172
LDS_PER_WAVE = 14336
class Att:
    def __init__(self, a, ldf='', stf='', lds_base=0):
        self.a = a; self.ldf = ldf; self.stf = stf; self.lds_base = lds_base
    def setup(self):
        a = self.a
        L, C, G, A_, T0, T1 = V_T, V_T+1, V_T+2, V_T+3, V_T+4, V_T+5
        a(f'''
        v_and_b32 v{L}, 63, v0
        v_and_b32 v{C}, 15, v{L}
        v_lshrrev_b32 v{G}, 4, v{L}
        v_lshrrev_b32 v{A_}, 2, v{C}
        v_lshlrev_b32 v{V_L16}, 4, v{L}
        s_mul_i32 s{S_LB}, s{S_W}, {LDS_PER_WAVE}
        s_add_u32 s{S_LB}, s{S_LB}, {self.lds_base}
        s_mov_b32 s{S_C}, {hex(f32(128 ** -0.5 * 1.4426950408889634))}
        v_mov_b32 v{V_NEG}, 0xf149f2ca
        v_and_b32 v{T0}, 3, v{L}
        v_lshlrev_b32 v{T0}, 4, v{T0}
        v_lshl_add_u32 v{T0}, v{A_}, 8, v{T0}
        v_add_u32 v{T0}, s{S_LB}, v{T0}
        v_lshl_add_u32 v{V_RM}, v{G}, 6, v{T0}
        v_add_u32 v{V_RM}, 8192, v{V_RM}
        v_lshrrev_b32 v{T1}, 1, v{G}
        v_lshl_add_u32 v{T0}, v{T1}, 10, v{T0}
        v_and_b32 v{T1}, 1, v{G}
        v_lshl_add_u32 v{V_RV}, v{T1}, 7, v{T0}
        v_and_b32 v{T0}, 1, v{A_}
        v_lshlrev_b32 v{T0}, 8, v{T0}
        v_lshl_add_u32 v{T0}, v{G}, 6, v{T0}
        v_lshrrev_b32 v{T1}, 1, v{A_}
        v_lshl_add_u32 v{T0}, v{T1}, 4, v{T0}
        v_and_b32 v{T1}, 1, v{L}
        v_lshl_add_u32 v{T0}, v{T1}, 3, v{T0}
        v_add_u32 v{T0}, s{S_LB}, v{T0}
        v_add_u32 v{V_RK}, 12288, v{T0}
        v_lshlrev_b32 v{V_GA}, 2, v{C}
        v_and_b32 v{T1}, 1, v{G}
        v_lshl_add_u32 v{T0}, v{T1}, 5, v{C}
        v_lshlrev_b32 v{T0}, 4, v{T0}
        v_lshrrev_b32 v{T1}, 1, v{G}
        v_lshl_add_u32 v{V_OA}, v{T1}, 10, v{T0}
        ''')
        for u in range(2):
            for t in range(2):
                for r in range(4):
                    m = 0
                    for l in range(64):
                        c, g = l % 16, l // 16
                        if 8 * g + 4 * t + r <= 8 * (c // 4) + 4 * u + c % 4: m |= 1 << l
                    i = S_MK + 2 * (8 * u + 4 * t + r)
                    a(f's_mov_b32 s{i}, {hex(m & 0xffffffff)}\ns_mov_b32 s{i+1}, {hex(m >> 32)}')
    def task(self):
        a = self.a; ld = self.ldf
        kq = lambda b, k, t: vr(b + 4 * (2 * k + t), 4)
        a(f'''
        s_lshl_b32 s{S_T0}, s{S_SEG}, 5
        s_add_u32 s{S_T0}, s{S_T0}, s{S_HEAD}
        s_lshl_b32 s{S_T1}, s{S_T0}, 11
        s_add_u32 s{S_T1}, s{S_T1}, {WS_KM}
        s_add_u32 m0, s{S_LB}, 12288
        s_lshl_b32 s{S_T2}, s{S_T0}, 13
        buffer_load_dwordx4 v{V_L16}, {WS}, s{S_T1} offen {ld} lds
        buffer_load_dwordx4 v{V_L16}, {WS}, s{S_T1} offen offset:1024 {ld} lds
        ''', tag='km')
        for b, base, tg in ((V_Q, WS_QP, 'q'), (V_K, WS_KP, 'k')):
            a(f's_add_u32 s{S_T1}, s{S_T2}, {base}\ns_add_u32 s{S_T3}, s{S_T1}, 4096')
            for i in range(8):
                a(f'buffer_load_dwordx4 {vr(b + 4*i, 4)}, v{V_L16}, {WS}, s{S_T1 if i < 4 else S_T3} offen offset:{1024*(i%4)} {ld}', tag=tg)
        a(f's_lshl_b32 s{S_T1}, s{S_SEG}, 7\ns_add_u32 s{S_T1}, s{S_T1}, {WS_G}')
        for u in range(2): a(f'buffer_load_dword v{V_G+u}, v{V_GA}, {WS}, s{S_T1} offen offset:{64*u} {ld}', tag='g')
        a(f's_add_u32 s{S_T1}, s{S_T2}, {WS_VP}\ns_mov_b32 m0, s{S_LB}\ns_add_u32 s{S_T3}, s{S_T1}, 4096')
        for i in range(4): a(f'buffer_load_dwordx4 v{V_L16}, {WS}, s{S_T1} offen offset:{1024*i} {ld} lds', tag='v')
        a(f's_add_u32 m0, s{S_LB}, 4096\ns_lshl_b32 s{S_T1}, s{S_T0}, 12')
        for i in range(4): a(f'buffer_load_dwordx4 v{V_L16}, {WS}, s{S_T3} offen offset:{1024*i} {ld} lds', tag='v')
        a(f's_add_u32 m0, s{S_LB}, 8192\ns_add_u32 s{S_T1}, s{S_T1}, {WS_VM}')
        for i in range(4): a(f'buffer_load_dwordx4 v{V_L16}, {WS}, s{S_T1} offen offset:{1024*i} {ld} lds', tag='v')
        a.wait_vm('km')
        for k in range(4):
            for y in range(2): a(f'ds_read_b64_tr_b16 {vr(V_KM + 4*k + 2*y, 2)}, v{V_RK} offset:{512*k + 32*y}')
        a.wait_vm('k')
        SX = lambda u, t: V_S + 12 * u + 4 * t
        for k in range(4):
            for u in range(2):
                for t in range(2):
                    d = vr(SX(u, t), 4)
                    a(f'v_mfma_f32_16x16x32_bf16 {d}, {kq(V_K, k, t)}, {kq(V_Q, k, u)}, {d if k else 0}')
        a.wait_lgkm()
        for k in range(4):
            for u in range(2):
                d = vr(SX(u, 2), 4)
                a(f'v_mfma_f32_16x16x32_bf16 {d}, {vr(V_KM + 4*k, 4)}, {kq(V_Q, k, u)}, {d if k else 0}')
        a.wait_vm('v')
        for et in range(8):
            o = 2048 * (et // 2) + 8 * (et % 2)
            for y in range(2): a(f'ds_read_b64_tr_b16 {vr(V_A + 6*et + 2*y, 2)}, v{V_RV} offset:{o + 64*y}')
            a(f'ds_read_b64_tr_b16 {vr(V_A + 6*et + 4, 2)}, v{V_RM} offset:{1024*(et//2) + 8*(et%2)}')
            if et == 4: a('s_waitcnt lgkmcnt(8)')
        for u in range(2):
            S = [SX(u, 0) + i for i in range(12)]
            MX, TT, NM = V_T + 3 * u, V_T + 3 * u + 1, V_T + 3 * u + 2
            for i in range(8):
                m = S_MK + 2 * (8 * u + i)
                a(f'v_cndmask_b32 v{S[i]}, v{V_NEG}, v{S[i]}, s[{m}:{m+1}]')
            a(f'v_max3_f32 v{MX}, v{S[0]}, v{S[1]}, v{S[2]}')
            for i in (3, 5, 7, 9): a(f'v_max3_f32 v{MX}, v{MX}, v{S[i]}, v{S[i+1]}')
            a(f'v_max_f32 v{MX}, v{MX}, v{S[11]}')
            for sw in ('16', '32'):
                a(f'v_mov_b32 v{TT}, v{MX}\nv_permlane{sw}_swap_b32 v{MX}, v{TT}\nv_max_f32 v{MX}, v{MX}, v{TT}')
            a(f'v_mul_f32_e64 v{NM}, -s{S_C}, v{MX}')
            for r in S: a(f'v_fma_f32 v{r}, v{r}, s{S_C}, v{NM}')
            for r in S: a(f'v_exp_f32 v{r}, v{r}')
            a(f'v_add_f32 v{MX}, v{S[8]}, v{S[9]}\nv_add_f32 v{TT}, v{S[10]}, v{S[11]}\nv_add_f32 v{MX}, v{MX}, v{TT}\nv_mul_f32 v{MX}, 0.5, v{MX}')
            for i in range(8): a(f'v_add_f32 v{MX}, v{MX}, v{S[i]}')
            for sw in ('16', '32'):
                a(f'v_mov_b32 v{TT}, v{MX}\nv_permlane{sw}_swap_b32 v{MX}, v{TT}\nv_add_f32 v{MX}, v{MX}, v{TT}')
            a(f'v_rcp_f32 v{MX}, v{MX}\nv_mul_f32 v{MX}, v{MX}, v{V_G+u}')
            for r in S: a(f'v_mul_f32 v{r}, v{r}, v{MX}')
            for i in range(6): a(f'v_cvt_pk_bf16_f32 v{S[i]}, v{S[2*i]}, v{S[2*i+1]}')
        a.wait_lgkm()
        D = lambda u, et: V_D + 4 * (8 * u + et)
        for u in range(2):
            for et in range(8): a(f'v_mfma_f32_16x16x32_bf16 {vr(D(u, et), 4)}, {vr(V_A + 6*et, 4)}, {vr(SX(u, 0), 4)}, 0')
        for u in range(2):
            for et in range(8): a(f'v_mfma_f32_16x16x16_bf16 {vr(D(u, et), 4)}, {vr(V_A + 6*et + 4, 2)}, {vr(SX(u, 1), 2)}, {vr(D(u, et), 4)}')
        a(f'''
        s_lshl_b32 s{S_T1}, s{S_T0}, 13
        s_add_u32 s{S_T1}, s{S_T1}, {WS_O}
        s_add_u32 s{S_T3}, s{S_T1}, 4096
        ''')
        for u in range(2):
            for j in range(4):
                d = D(u, 2 * j)
                for i in range(4): a(f'v_cvt_pk_bf16_f32 v{d+i}, v{d+2*i}, v{d+2*i+1}')
                a(f'buffer_store_dwordx4 {vr(d, 4)}, v{V_OA}, {WS}, s{S_T1 if j < 2 else S_T3} offen offset:{2048*(j%2) + 256*u} {self.stf}')
        a.reset_counters()
```

```python
from asmlib import *
from layout import *
import struct
import sched

L_M = 131072
L_KX = L_M + 9216
L_VX = L_KX + 8192
L_X = L_VX + 8192
XS = 1160
L_XO = L_M + 4096
XQO = L_X - L_XO
L_CHALF = L_X + 5120
L_CZERO = L_CHALF + 1024
L_END = L_CZERO + 1024
assert L_END == 163840
IDX, VWL, VB, VBD, VXW, VTR, VTRK, VTRZ, VVX, VPST, VRD, VMT = range(12)
def Q(i): return 12 + 4 * i
def q4(i): return vr(Q(i), 4)
def q8(i): return vr(Q(i), 8)
S_WS = 4
S_DBG = 8
S_H, S_W, S_STEP = 12, 13, 14
S_RD = 16
S_PART, S_MLD, S_MST = 20, 21, 22
S_HAS = 23
S_MSK = 24
S_LO = 26
S_C, S_SPIN = 28, 29
S_T0, S_T1 = 30, 31
S_WQ, S_WK, S_WV, S_WO = 32, 36, 40, 44
S_MA, S_MB = 32, 40
S_WBASE = 48
S_KXS, S_VXS, S_KMS, S_VMS = 49, 50, 51, 52
S_MM0 = 53
S_TM = 54
S_HIST = 56
S_T2, S_T3 = 58, 59
S_MEM0 = 60
S_TCH, S_KXM, S_VXM, S_MTG = 64, 65, 66, 67
S_C1, S_C2, S_IOF = 68, 69, 70
S_XVO = 71
S_FLG = 15
S_FM = 62
S_W1 = 60
S_SEL = 72
S_ST = 80

def f32(x): return struct.unpack('<I', struct.pack('<f', x))[0]

LDS_DOUBLES = [('o', 1, 1), ('o', 1, 3), ('z',), ('q', 5), ('k', 6), ('k', 8), ('v', 2), ('v', 3)]
def actual_cb(p):
    return 18 * (p // 8) + p % 8 if p < 32 else 18 * ((p - 32) // 10) + 8 + (p - 32) % 10
def all_doubles():
    d = []
    for pp in range(2):
        for k in range(4): d.append(('o', pp, k))
    d.append(('z',))
    for X in 'qkv':
        for ks in range(9): d.append((X, ks))
    return d
def ops_of(d):
    if d[0] in 'qkv': return [(d[0], 0, d[1]), (d[0], 1, d[1])]
    if d[0] == 'o': return [('o', 2 * d[1], d[2]), ('o', 2 * d[1] + 1, d[2])]
    return [('z', 0), ('z', 1)]
REG_DOUBLES = [d for d in all_doubles() if d not in LDS_DOUBLES]
ORDER = REG_DOUBLES + LDS_DOUBLES
WREG = {}; WLDS = {}
for i, d in enumerate(REG_DOUBLES):
    for j, op in enumerate(ops_of(d)):
        n = 2 * i + j
        WREG[op] = ('a', 8 * n) if n < 32 else ('v', 64 + 8 * (n - 32))
for i, d in enumerate(LDS_DOUBLES):
    slot = (len(REG_DOUBLES) + i) % 8
    for j, op in enumerate(ops_of(d)):
        WLDS[op] = slot * 4096 + j * 2048
def wreg(op):
    f, b = WREG[op]; return vr(b, 8, f)
WS = f's[{S_WS}:{S_WS+3}]'

def region_of(i):
    adr = i.ops[0] if 'write' in i.op else i.ops[1]
    off = 0
    for m in i.mods:
        if m.startswith('offset:'): off = int(m[7:])
    if adr == f'v{VWL}': return None, ()
    if adr == f'v{VB}':
        if off < 4096: return 'MA', ('B1b',)
        if off < 9216: return 'MB', ()
        if off < L_VX - L_M: return 'KX', ('B1b', 'B2')
        return None, ()
    if adr == f'v{VVX}': return 'VX', ('B1b', 'B2')
    return 'X', ()

class Chain:
    def __init__(self, a, debug=False, stamps=False, nsteps=64, opt=None):
        self.a = a; self.debug = debug; self.stamps = stamps; self.nsteps = nsteps
        self.opt = opt or {}
        self.stn = {}
    def stamp(self, name):
        if not self.stamps or name not in self.stamps or name in ('P1', 'B2', 'S', 'PV', 'B4'): return
        i = self.stamps.index(name)
        self.a(f's_mem{"real" if self.opt.get("rt") else ""}time s[{S_ST + 2*i}:{S_ST + 2*i + 1}]')
    def setup(self):
        a = self.a
        for srd, ka in ((S_WQ, KA_WQ), (S_WK, KA_WK), (S_WV, KA_WV), (S_WO, KA_WO), (S_MEM0, KA_MEM0)):
            a(f's_load_dwordx2 s[{srd}:{srd+1}], s[0:1], {ka}')
        a('s_waitcnt lgkmcnt(0)')
        for srd in (S_WQ, S_WK, S_WV, S_WO):
            a(f's_mov_b32 s{srd+2}, 4718592\ns_mov_b32 s{srd+3}, 0x00020000')
        a(f's_mov_b32 s{S_MEM0+2}, 9216\ns_mov_b32 s{S_MEM0+3}, 0x00020000')
        L, N, G, T0, T1, T2, T3 = 12, 13, 14, 15, 16, 17, 18
        a(f'''
        v_and_b32 v{L}, 63, v0
        v_and_b32 v{N}, 15, v{L}
        v_lshrrev_b32 v{G}, 4, v{L}
        s_lshl_b32 s{S_WBASE}, s{S_W}, 15
        s_mul_i32 s{S_T2}, s{S_W}, 4096
        s_add_u32 s{S_MM0}, s{S_T2}, {L_M}
        s_add_u32 s{S_MLD}, s{S_T2}, {WS_MBUF - L_M}
        s_add_u32 s{S_MTG}, s{S_T2}, {WS_MBUF}
        v_lshlrev_b32 v{T0}, 4, v{L}
        v_add_u32 v{VWL}, s{S_WBASE}, v{T0}
        v_add_u32 v{VB}, {L_M}, v{T0}
        v_mov_b32 v{T0}, 0x88888888
        v_mov_b32 v{T1}, 0xdddddddd
        v_cmp_gt_u32 vcc, 8, v{N}
        v_cndmask_b32 v{IDX}, v{T1}, v{T0}, vcc
        ''')
        a(f'''
        s_mul_i32 s{S_T0}, s{S_W}, {XS}
        s_add_u32 s{S_T1}, s{S_T0}, {L_X}
        v_lshlrev_b32 v{T0}, 3, v{N}
        v_lshrrev_b32 v{T1}, 1, v{G}
        v_lshl_add_u32 v{T1}, v{T1}, 7, v{T0}
        v_and_b32 v{T2}, 1, v{G}
        v_lshl_add_u32 v{T1}, v{T2}, 2, v{T1}
        v_add_u32 v{VXW}, s{S_T1}, v{T1}
        ''')
        a(f'''
        v_bfe_u32 v{T0}, v{L}, 3, 1
        v_lshl_add_u32 v{T0}, v{G}, 2, v{T0}
        v_lshlrev_b32 v{T0}, 3, v{T0}
        v_bfe_u32 v{T1}, v{L}, 2, 1
        v_lshl_add_u32 v{T0}, v{T1}, 7, v{T0}
        v_and_b32 v{T1}, 1, v{L}
        v_mul_u32_u24 v{T1}, 320, v{T1}
        v_add_u32 v{T1}, v{T1}, v{T0}
        v_add_u32 v{VTR}, {L_XO}, v{T1}
        v_bfe_u32 v{T2}, v{L}, 1, 1
        v_mul_u32_u24 v{T1}, 320, v{T2}
        v_add_u32 v{T1}, v{T1}, v{T0}
        v_add_u32 v{VTRK}, {L_X + 576}, v{T1}
        v_mul_u32_u24 v{T1}, {2*XS}, v{T2}
        v_add_u32 v{VTRZ}, v{T1}, v{VTR}
        ''')
        a(f'''
        s_lshl_b32 s{S_T0}, s{S_W}, 11
        s_add_u32 s{S_VXM}, s{S_T0}, {L_VX}
        s_add_u32 s{S_KXM}, s{S_T0}, {L_KX}
        s_add_u32 s{S_XVO}, s{S_T0}, {L_VX - L_M}
        v_lshl_add_u32 v{VVX}, v{L}, 2, s{S_VXM}
        s_lshl_b32 s{S_T1}, s{S_W}, 3
        s_add_u32 s{S_T1}, s{S_T1}, 31
        v_min_u32 v{T0}, s{S_T1}, v{L}
        v_lshlrev_b32 v{T0}, 7, v{T0}
        v_add_u32 v{VMT}, 120, v{T0}
        ''')
        a(f'''
        s_mul_i32 s{S_T2}, s{S_H}, {PSTRIDE}
        s_mul_i32 s{S_T1}, s{S_W}, 2304
        s_add_u32 s{S_T2}, s{S_T2}, s{S_T1}
        v_lshrrev_b32 v{T0}, 1, v{G}
        v_lshlrev_b32 v{T0}, 8, v{T0}
        v_lshl_add_u32 v{T0}, v{N}, 4, v{T0}
        v_and_b32 v{T1}, 1, v{G}
        v_lshl_add_u32 v{T0}, v{T1}, 3, v{T0}
        v_add_u32 v{VPST}, s{S_T2}, v{T0}
        ''')
        a(f'''
        s_lshl_b32 s{S_T0}, s{S_W}, 5
        s_add_u32 s{S_T0}, s{S_T0}, s{S_H}
        s_cmp_lt_u32 s{S_T0}, 72
        s_cselect_b32 s{S_HAS}, 1, 0
        s_lshl_b32 s{S_T1}, s{S_T0}, 7
        s_add_u32 s{S_MST}, s{S_T1}, {WS_MBUF}
        s_sub_u32 s{S_MST}, s{S_MST}, s{S_T2}
        s_add_u32 s{S_HIST}, s{S_MST}, {WS_MHIST + 9216 - WS_MBUF}
        s_lshr_b32 s{S_T1}, s{S_T0}, 3
        s_mul_i32 s{S_T1}, s{S_T1}, 10
        s_add_u32 s{S_T1}, s{S_T1}, s{S_T0}
        s_sub_u32 s{S_T3}, s{S_T0}, 32
        s_mul_i32 s{S_SPIN}, s{S_T3}, 205
        s_lshr_b32 s{S_SPIN}, s{S_SPIN}, 11
        s_lshl_b32 s{S_SPIN}, s{S_SPIN}, 3
        s_add_u32 s{S_T3}, s{S_T3}, s{S_SPIN}
        s_add_u32 s{S_T3}, s{S_T3}, 8
        s_cmp_lt_u32 s{S_T0}, 32
        s_cselect_b32 s{S_T0}, s{S_T1}, s{S_T3}
        s_lshl_b32 s{S_T0}, s{S_T0}, 7
        s_mov_b32 s{S_T1}, {PSTRIDE}
        v_lshrrev_b32 v{T0}, 3, v{L}
        v_mul_lo_u32 v{T0}, v{T0}, s{S_T1}
        v_and_b32 v{T1}, 7, v{L}
        v_lshl_add_u32 v{T0}, v{T1}, 4, v{T0}
        v_add_u32 v{VRD}, s{S_T0}, v{T0}
        ''')
        for i in range(4):
            a(f's_mov_b32 s{S_RD+i}, {WS_PART + 8*i*PSTRIDE}')
        a(f'''
        s_mov_b32 s{S_PART}, {WS_PART}
        s_mov_b32 s{S_MSK}, 0x00ff00ff
        s_mov_b32 s{S_MSK+1}, 0
        s_mov_b32 s{S_LO}, -1
        s_mov_b32 s{S_LO+1}, 0
        s_mov_b32 s{S_C}, {hex(f32(128 ** -0.5 * 1.4426950408889634))}
        s_lshl_b32 s{S_T0}, s{S_H}, 13
        s_lshl_b32 s{S_T1}, s{S_W}, 11
        s_add_u32 s{S_T1}, s{S_T1}, s{S_T0}
        s_add_u32 s{S_KXS}, s{S_T0}, s{S_KXM}
        s_add_u32 s{S_KXS}, s{S_KXS}, {WS_KP - L_M - L_KX}
        s_add_u32 s{S_VXS}, s{S_T1}, {WS_VP - L_M}
        s_and_b32 s{S_T1}, s{S_W}, 1
        s_lshl_b32 s{S_T1}, s{S_T1}, 12
        s_add_u32 s{S_T0}, s{S_T0}, s{S_T1}
        s_lshr_b32 s{S_T1}, s{S_W}, 1
        s_mul_i32 s{S_T1}, s{S_T1}, {WS_VP - WS_KP}
        s_add_u32 s{S_T0}, s{S_T0}, s{S_T1}
        s_add_u32 s{S_TCH}, s{S_T0}, {WS_KP - 8*L_M}
        s_lshl_b32 s{S_T0}, s{S_H}, 2
        s_add_u32 s{S_T0}, s{S_T0}, s{S_W}
        s_lshl_b32 s{S_T1}, s{S_H}, 7
        s_add_u32 s{S_FLG}, s{S_T1}, {WS_FLAG}
        s_lshl_b32 s{S_T1}, s{S_T0}, 10
        s_add_u32 s{S_VMS}, s{S_T1}, {WS_VM - L_M}
        s_lshl_b32 s{S_T1}, s{S_T0}, 9
        s_add_u32 s{S_KMS}, s{S_T1}, {WS_KM}
        s_sub_u32 s{S_KMS}, s{S_KMS}, s{S_T2}
        ''')
        a(f'''
        v_and_b32 v{T0}, 1, v{N}
        v_lshlrev_b32 v{T0}, 4, v{T0}
        v_mov_b32 v{T1}, 0x3f80
        v_lshlrev_b32 v{VBD}, v{T0}, v{T1}
        ''')
        for jj in range(4):
            m = (3 << (2 * jj)) * 0x00010001
            a(f's_mov_b32 s{S_SEL+2*jj}, {hex(m)}\ns_mov_b32 s{S_SEL+2*jj+1}, {hex(m)}')
        for jj in range(4):
            a(f'v_mov_b32 v{24+jj}, 0x3f003f00\nv_mov_b32 v{28+jj}, 0')
        a(f'''
        ds_write_b128 v{VB}, v[24:27] offset:{L_CHALF - L_M}
        ds_write_b128 v{VB}, v[28:31] offset:{L_CZERO - L_M}
        ''')
        for pi in range(4):
            a(f'buffer_store_dwordx2 v[28:29], v{VPST}, {WS}, s{S_PART} offen offset:{512*pi} sc1')
        lab = a.uid('Lni')
        a(f'''
        buffer_store_dword v28, off, {WS}, s{S_FLG} sc1
        s_mov_b64 exec, s[{S_LO}:{S_LO+1}]
        buffer_store_dwordx2 v[28:29], v{VPST}, {WS}, s{S_PART} offen offset:2048 sc1
        s_mov_b64 exec, -1
        s_cmp_eq_u32 s{S_HAS}, 0
        s_cbranch_scc1 {lab}
        s_mov_b64 exec, s[{S_MSK}:{S_MSK+1}]
        buffer_store_dwordx2 v[28:29], v{VPST}, {WS}, s{S_MST} offen sc1
        s_mov_b64 exec, -1
        {lab}:
        s_waitcnt vmcnt(0) lgkmcnt(0)
        s_barrier
        ''')
        lab = a.uid('Lsg')
        a(f'''
        s_cmp_eq_u32 s{S_W}, 0
        s_cbranch_scc0 {lab}
        s_mov_b64 exec, 1
        v_mov_b32 v20, 1
        buffer_atomic_add v20, off, s[{S_DBG}:{S_DBG+3}], 0 offset:{D_INIT}
        s_mov_b64 exec, -1
        {lab}:
        ''')
        a.reset_counters()
    def load_weights(self):
        a = self.a
        L, N, G = 12, 13, 14
        A_, CC, T0, T1 = 15, 16, 17, 18
        VQ, VO, VZ, RQ, RO, RZ, RV = 20, 21, 22, 23, 24, 25, 26
        TMP = 32
        a(f'''
        v_lshrrev_b32 v{A_}, 2, v{N}
        v_and_b32 v{CC}, 3, v{L}
        v_lshrrev_b32 v{T0}, 2, v{L}
        v_lshlrev_b32 v{T0}, 13, v{T0}
        v_lshl_add_u32 v{VQ}, v{CC}, 4, v{T0}
        s_mov_b32 s{S_T0}, 1152
        v_lshrrev_b32 v{T0}, 3, v{L}
        v_mul_lo_u32 v{T0}, v{T0}, s{S_T0}
        v_and_b32 v{T1}, 7, v{L}
        v_lshl_add_u32 v{VO}, v{T1}, 4, v{T0}
        v_lshrrev_b32 v{T0}, 1, v{L}
        v_mul_lo_u32 v{T0}, v{T0}, s{S_T0}
        v_and_b32 v{T1}, 1, v{L}
        v_lshl_add_u32 v{VZ}, v{T1}, 4, v{T0}
        ''')
        a(f'''
        v_lshrrev_b32 v{T0}, 1, v{G}
        v_lshlrev_b32 v{T0}, 4, v{T0}
        v_and_b32 v{T1}, 1, v{G}
        v_lshl_add_u32 v{T0}, v{T1}, 2, v{T0}
        v_and_b32 v{T1}, 1, v{A_}
        v_lshl_add_u32 v{T0}, v{T1}, 3, v{T0}
        v_lshrrev_b32 v{T1}, 1, v{A_}
        v_add_u32 v{T0}, v{T0}, v{T1}
        v_lshlrev_b32 v{T0}, 6, v{T0}
        v_lshl_add_u32 v{T0}, v{CC}, 3, v{T0}
        v_add_u32 v{RV}, s{S_WBASE}, v{T0}
        ''')
        a(f'''
        v_lshl_add_u32 v{T0}, v{G}, 2, v{T1}
        v_lshlrev_b32 v{T0}, 6, v{T0}
        v_and_b32 v{T1}, 1, v{A_}
        v_lshl_add_u32 v{T0}, v{T1}, 5, v{T0}
        v_lshl_add_u32 v{T0}, v{CC}, 3, v{T0}
        v_add_u32 v{RQ}, s{S_WBASE}, v{T0}
        ''')
        a(f'''
        v_lshrrev_b32 v{T0}, 1, v{A_}
        v_lshlrev_b32 v{T0}, 4, v{T0}
        v_lshl_add_u32 v{T0}, v{G}, 1, v{T0}
        v_and_b32 v{T1}, 1, v{A_}
        v_lshlrev_b32 v{RO}, 7, v{T0}
        v_lshl_add_u32 v{RO}, v{T1}, 5, v{RO}
        v_lshl_add_u32 v{RO}, v{CC}, 3, v{RO}
        v_add_u32 v{RO}, s{S_WBASE}, v{RO}
        v_lshl_add_u32 v{T0}, v{T1}, 6, v{T0}
        v_lshlrev_b32 v{T0}, 5, v{T0}
        v_lshl_add_u32 v{T0}, v{CC}, 3, v{T0}
        v_add_u32 v{RZ}, s{S_WBASE}, v{T0}
        ''')
        a(f'''
        s_lshl_b32 s{S_T2}, s{S_H}, 8
        s_lshl_b32 s{S_T0}, s{S_W}, 6
        s_add_u32 s{S_T2}, s{S_T2}, s{S_T0}
        s_mul_i32 s{S_T3}, s{S_H}, {128*1152}
        s_mul_i32 s{S_T0}, s{S_W}, 288
        s_add_u32 s{S_T3}, s{S_T3}, s{S_T0}
        ''')
        def issue(i):
            d = ORDER[i]; slot = i % 8
            for x in range(4):
                a(f's_add_u32 m0, s{S_WBASE}, {slot*4096 + x*1024}')
                if d[0] in 'qkv':
                    srd = {'q': S_WQ, 'k': S_WK, 'v': S_WV}[d[0]]; v = VQ
                    a(f's_add_u32 s{S_T0}, s{S_T2}, {8 * actual_cb(8*d[1] + 2*x) * 8192}')
                elif d[0] == 'o':
                    srd = S_WO; v = VO
                    a(f's_add_u32 s{S_T0}, s{S_T3}, {(32*d[2] + 8*x) * 1152 + 128*d[1]}')
                else:
                    srd = S_WO; v = VZ
                    a(f's_add_u32 s{S_T0}, s{S_T3}, {32*x*1152 + 256}')
                a(f'buffer_load_dwordx4 v{v}, s[{srd}:{srd+3}], s{S_T0} offen lds', tag=('w', i))
        for i in range(8): issue(i)
        for i, d in enumerate(ORDER):
            slot = i % 8
            a.wait_vm(('w', i))
            for j, op in enumerate(ops_of(d)):
                if op in WREG: f, b = WREG[op]
                else: f, b = 'v', TMP + 8 * j
                for al in range(2):
                    for y in range(2):
                        if d[0] in 'qkv': v = RV; off = (32*al + 2*y) * 64 + 32*j
                        elif d[0] == 'o': v = RO; off = (8*al + y) * 128 + 64*j
                        else: v = RZ; off = (32*j + 8*al + y) * 32
                        a(f'ds_read_b64_tr_b16 {vr(b + 4*al + 2*y, 2, f)}, v{v} offset:{slot*4096 + off}')
            a.wait_lgkm()
            if d in LDS_DOUBLES:
                for k in range(4):
                    a(f'ds_write_b128 v{VWL}, {vr(TMP + 4*k, 4)} offset:{slot*4096 + k*1024}')
                a.wait_lgkm()
            if i + 8 < len(ORDER): issue(i + 8)
    def touch(self):
        T = Q(12) + 3
        return [f'v_lshlrev_b32 v{T}, 3, v{VB}', f's_mov_b32 m0, {L_X + 4672}', f's_mov_b64 exec, s[{S_LO}:{S_LO+1}]',
                f'buffer_load_dword v{T}, {WS}, s{S_TCH} offen sc1 lds', 's_mov_b64 exec, -1', f's_add_u32 s{S_TCH}, s{S_TCH}, {32*8192}']
    def kx_dma(self):
        return ([f's_mov_b32 m0, s{S_KXM}', f's_nop 0'] + [f'buffer_load_dwordx4 v{VB}, {WS}, s{S_KXS} offen offset:{1024*j} sc1 lds' for j in range(2)] +
                [f's_add_u32 s{S_KXS}, s{S_KXS}, {32*8192}'])
    def prep_a(self, par):
        a = self.a
        for r in range(Q(2), Q(6)): a(f'v_mov_b32 v{r}, 0')
        a(f'v_mov_b32 v{Q(12)}, {-1 if par else 0}\nv_mov_b32 v{Q(12)+1}, {par}')
    def prep_b(self):
        a = self.a
        a(f'v_add_u32 v{Q(8)}, s{S_XVO}, v{VB}')
        for r in range(Q(10), Q(12)): a(f'v_mov_b32 v{r}, 0')
        a(f'ds_read_b128 {q4(8)}, v{Q(8)}')
    def prep_p1(self, par):
        self.prep_a(par); self.prep_b()
    def first_m(self):
        a = self.a
        L, N, G = 12, 13, 14
        lj = a.uid('Lfj'); lp = a.uid('Lfp')
        if self.opt.get('sync'):
            lk = a.uid('Lkv')
            a(f"""
            v_and_b32 v15, 7, v{L}
            v_lshlrev_b32 v15, 5, v15
            s_mov_b32 s{S_SPIN}, 0
            {lk}:
            buffer_load_dword v16, v15, s[{S_DBG}:{S_DBG+3}], 0 offen offset:{D_MT(0)} sc1
            s_add_u32 s{S_SPIN}, s{S_SPIN}, 1
            s_cmp_gt_u32 s{S_SPIN}, 0x40000
            s_cbranch_scc1 L_chain_fail
            s_sleep 4
            s_waitcnt vmcnt(0)
            v_and_b32 v16, 0xff, v16
            v_cmp_ne_u32 vcc, 64, v16
            s_cbranch_vccnz {lk}
            """)
        for x in self.touch() + self.touch(): a(x)
        a(f"""
        s_cmp_eq_u32 s{S_W}, 0
        s_cbranch_scc0 {lj}
        v_and_b32 v15, 7, v{N}
        v_mul_u32_u24 v15, 1152, v15
        v_lshrrev_b32 v16, 3, v{L}
        """)
        for ks in range(9):
            if ks < 4: a(f'v_add_u32 v17, {18*ks}, v16')
            else: a(f'v_add_u32 v17, {8*ks - 32}, v16\nv_mul_u32_u24 v18, 205, v17\nv_lshrrev_b32 v18, 11, v18\nv_lshl_add_u32 v17, v18, 3, v17\nv_add_u32 v17, 8, v17')
            a(f'v_lshl_add_u32 v17, v17, 4, v15\ns_mov_b32 m0, {L_M + 1024*ks}\ns_nop 0')
            a(f'buffer_load_dwordx4 v17, s[{S_MEM0}:{S_MEM0+3}], 0 offen lds')
        a(f"""
        s_mov_b32 s{S_SPIN}, 0
        {lp}:
        buffer_load_dword v15, off, s[{S_DBG}:{S_DBG+3}], 0 offset:{D_INIT} sc1
        s_add_u32 s{S_SPIN}, s{S_SPIN}, 1
        s_cmp_gt_u32 s{S_SPIN}, 0x40000
        s_cbranch_scc1 L_chain_fail
        s_waitcnt vmcnt(0)
        v_cmp_gt_u32 vcc, {self.opt.get('solo', 32)}, v15
        s_cbranch_vccnz {lp}
        {lj}:
        """)
        self.prep_p1(0)
        for x in self.kx_dma(): a(x)
        a(f"""
        s_mov_b32 s{S_STEP}, 0
        s_mov_b32 s{S_C1}, 0
        s_mov_b32 s{S_C2}, 0
        s_mov_b32 s{S_IOF}, 0xf0000000
        s_waitcnt vmcnt(0) lgkmcnt(0)
        s_mov_b32 s{S_W1}, 0
        s_cmp_eq_u32 s{S_W}, 3
        s_cselect_b32 s{S_FM}, 1, 0
        s_mov_b32 s{S_FM+1}, 0
        """)
        a.reset_counters()
    def step(self, stf, par):
        real = self.a
        A_ = [real]
        class _A:
            def __call__(s_, text, tag=None, **kw):
                return A_[0](text, tag, **kw) if A_[0] is not real else real(text, tag)
            def __getattr__(s_, n): return getattr(A_[0], n)
        a = _A()
        sfx = stf.replace(' ', '') + str(par)
        otag = 1 - par
        def rdM(q, ks): a(f'ds_read_b128 {q4(q)}, v{VB} offset:{1024*ks}', tag=('q', q))
        def rdC(q, off): a(f'ds_read_b128 {q4(q)}, v{VB} offset:{off - L_M}', tag=('q', q))
        def zero(q): rdC(q, L_CZERO)
        def rdW1(q, op, h): a(f'ds_read_b128 {q4(q+h)}, v{VWL} offset:{WLDS[op] + 1024*h}', tag=('q', q))
        def rdW(q, op): rdW1(q, op, 0); rdW1(q, op, 1)
        def rdKX(q, t, k): rdC(q, L_KX + (2*k + t) * 1024)
        def rdTR1(q, v, off, y): a(f'ds_read_b64_tr_b16 {vr(Q(q) + 2*y, 2)}, v{v} offset:{off + 16*y}', tag=('q', q))
        def rdTR(q, v, off): rdTR1(q, v, off, 0); rdTR1(q, v, off, 1)
        def wq(q): a.wait_lgkm(('q', q))
        def smf(acc, A, B): a(f'v_smfmac_f32_16x16x64_bf16 {q4(acc)}, {q4(A)}, {B}, v{IDX}')
        def mfma(acc, A, B, first): a(f'v_mfma_f32_16x16x32_bf16 {q4(acc)}, {q4(A)}, {q4(B)}, {"0" if first else q4(acc)}')
        def pack(q): return [f'v_cvt_pk_bf16_f32 v{Q(q)}, v{Q(q)}, v{Q(q)+1}', f'v_cvt_pk_bf16_f32 v{Q(q)+1}, v{Q(q)+2}, v{Q(q)+3}']
        def settag(r): return f'v_or_b32 v{r}, 1, v{r}' if otag else f'v_and_b32 v{r}, -2, v{r}'
        def do(x):
            if x is not None: x() if callable(x) else a(x)
        def run(fl, n):
            for _ in range(n):
                if fl: do(fl.pop(0))
        def halfsum(x, y):
            return ([f'v_permlane32_swap_b32 v{Q(x)+r}, v{Q(y)+r}' for r in range(4)] +
                    [f'v_add_f32 v{Q(x)+r}, v{Q(x)+r}, v{Q(y)+r}' for r in range(4)] + pack(x))
        def rdTRk(q, v, k, o=0): rdTR1(q, v, XS * k + o, 0); rdTR1(q, v, XS * k + o, 1)
        def chkop(A): return f'v_bitop3_b32 v{CHK}, v{CHK}, v{Q(A)}, v{Q(A)+2} bitop3:{"0x80" if par else "0xfe"}'
        def delay(n):
            while n > 0:
                a(f's_nop {min(n, 16) - 1}'); n -= 16
        CHK, TG, TT3 = Q(12), Q(12) + 1, Q(12) + 3
        def mround(n, tg=None):
            a(f'buffer_load_dword v{tg or TG}, v{VMT}, {WS}, s{S_MTG} offen sc1')
            a(f's_mov_b32 m0, s{S_MM0}\ns_add_u32 s{S_T0}, s{S_MLD}, 4096')
            for j in range(4): a(f'buffer_load_dwordx4 v{VB}, {WS}, s{S_MLD} offen offset:{1024*j} sc1 lds')
            if n == 5:
                a(f's_add_u32 m0, s{S_MM0}, 4096\ns_nop 0')
                a(f'buffer_load_dwordx4 v{VB}, {WS}, s{S_T0} offen sc1 lds')
        a(f'L_b1{sfx}:')
        a('s_barrier   ; B1')
        self.stamp('B1')
        rec = sched.Rec(real); A_[0] = rec
        rdM(0, 0); rdM(1, 1)
        slots = [(X, t, ks) for ks in range(4) for X in 'qkv' for t in range(2)] + [(X, t, ks) for ks in range(4, 9) for X in 'qk' for t in range(2)]
        ACC = {'q': 2, 'k': 4, 'v': 10}
        gaps = {i: [] for i in range(50)}
        c1 = self.opt.get('c1', 9); nb = self.opt.get('nb', 21)
        clob = [('v', TG), ('v', TT3), ('s', 'm0'), ('s', S_T0), ('s', 'vcc'), ('s', 'scc')]
        if self.opt.get('post'):
            gaps[c1] += [lambda: a(f's_cmp_eq_u32 s{S_W1}, 1\ns_cbranch_scc1 L_ra{sfx}\nL_rak{sfx}:', w=clob)]
        else:
            gaps[c1 - 2] += [lambda: a('s_waitcnt vmcnt(0)', w=[('v', TG), ('v', TG + 1), ('v', TT3)]), f'v_and_b32 v{TT3}, 1, v{TG}']
            gaps[c1 - 1] += [f'v_cmp_ne_u32 vcc, {par}, v{TT3}']
            gaps[c1] += [lambda: a(f's_cbranch_vccnz L_ra{sfx}\nL_rak{sfx}:', w=clob)]
        gaps[c1] += [f's_mov_b32 m0, s{S_VXM}', f'buffer_store_dwordx4 {q4(8)}, v{VB}, {WS}, s{S_IOF} offen sc1']
        gaps[c1 + 3] += [f'buffer_load_dwordx4 v{VB}, {WS}, s{S_VXS} offen sc1 lds']
        gaps[c1 + 6] += [f'buffer_load_dwordx4 v{VB}, {WS}, s{S_VXS} offen offset:1024 sc1 lds']
        lseq = [('v', 2), ('v', 3), ('q', 5), ('k', 6), ('k', 8)]
        for j, g in enumerate((2, 3, c1 + 1, c1 + 2)): gaps[g] += [lambda t=j // 2, h=j % 2: rdW1(6 + 2 * t, ('v', t, 2), h)]
        gaps[nb - 2] += [lambda: a('s_waitcnt vmcnt(3)', w=[('v', TG), ('v', TT3)]), f'v_and_b32 v{TT3}, 1, v{TG}']
        gaps[nb - 1] += [f'v_cmp_ne_u32 vcc, {par}, v{TT3}']
        gaps[nb] += [lambda: a(f's_cbranch_vccnz L_rb{sfx}\nL_rbk{sfx}:\ns_barrier   ; B1b', w=clob)]
        gaps[33] += [f's_mov_b32 m0, {L_X + 4672}', f'v_lshlrev_b32 v{TT3}, 3, v{VB}']
        gaps[34] += [f's_mov_b64 exec, s[{S_LO}:{S_LO+1}]\nbuffer_load_dword v{TT3}, {WS}, s{S_TCH} offen sc1 lds\ns_mov_b64 exec, -1']
        gaps[37] += [f's_sub_u32 s{S_T1}, s{S_STEP}, 1', f's_max_i32 s{S_T1}, s{S_T1}, 0', f'v_mov_b32 v{TT3}, s{S_T1}']
        gaps[38] += [f's_mov_b64 exec, s[{S_FM}:{S_FM+1}]\nbuffer_store_dword v{TT3}, off, {WS}, s{S_FLG} sc1\ns_mov_b64 exec, -1']
        gaps[42] += [lambda: rdKX(6, 0, 0)]
        last = {ks: max(i for i, x in enumerate(slots) if x[2] == ks) for ks in range(9)}
        for ks in range(9):
            if ks not in (4, 5): gaps[{0: 4, 1: 10, 2: 14, 3: 18}.get(ks, last[ks] - 1)] += [chkop(ks % 2)]
            gaps[nb if ks == 2 else last[ks]] += [lambda ks=ks: rdM(ks % 2, ks + 2 if ks < 7 else ks - 3)]
        for i, (X, t, ks) in enumerate(slots):
            A = ks % 2
            if i == 0 or slots[i-1][2] != ks: wq(A)
            l = (X, t, ks) in WLDS
            ws = 6 + 2 * t
            if l: wq(ws)
            smf(ACC[X] + t, A, q8(ws) if l else wreg((X, t, ks)))
            if l and (X, ks) != lseq[-1]:
                Y, n = lseq[lseq.index((X, ks)) + 1]
                o = 0
                gaps[i + o + (0, 1)[t]] += [lambda ws=ws, op=(Y, t, n): rdW1(ws, op, 0)]
                gaps[i + o + (2, 2)[t]] += [lambda ws=ws, op=(Y, t, n): rdW1(ws, op, 1)]
            for x in gaps[i]: do(x)
        self.stamp('P1')
        def V(ks, A, nxt, mid=(), end=()):
            wq(A)
            for t in range(2):
                smf(10 + t, A, wreg(('v', t, ks)))
                if t == 0:
                    for x in mid: do(x)
            if nxt is not None: rdM(A, nxt)
            for x in end: do(x)
        chk = [f's_cbranch_vccz L_ok{sfx}'] + ([f's_cmp_eq_u32 s{S_STEP}, 0', f's_cbranch_scc1 L_ok{sfx}'] if par == 0 else []) + [f's_branch L_redo{sfx}', f'L_ok{sfx}:']
        if self.opt.get('noexch'): chk = [f's_cbranch_vccz L_ok{sfx}', f'L_ok{sfx}:']
        chk = [lambda c='\n'.join(chk): a(c, w=[('s', 'scc'), ('s', S_KMS), ('s', S_VXS), ('s', S_TCH)])]
        hq, hk = halfsum(2, 3), halfsum(4, 5)
        mq = [f'v_mul_f32 v{Q(2)+r}, s{S_C}, v{Q(2)+r}' for r in range(4)]
        V(4, 1, 6, mid=[lambda: rdKX(7, 1, 0), chkop(1)], end=hq[0:4])
        V(5, 0, 7, mid=[lambda: rdKX(8, 0, 1), chkop(0)] + hq[4:8], end=mq + hq[8:10])
        V(6, 1, 8, mid=[lambda: a(f'ds_write2_b32 v{VXW}, v{Q(2)}, v{Q(2)+1} offset0:0 offset1:80', tag='x')] + hk[0:4],
          end=[lambda: rdKX(9, 1, 1), f'v_and_b32 v{CHK}, 1, v{CHK}', f'v_cmp_ne_u32 vcc, {par}, v{CHK}'] + hk[4:10])
        V(7, 0, None, mid=[lambda: a(f'ds_write2_b32 v{VXW}, v{Q(4)}, v{Q(4)+1} offset0:144 offset1:224', tag='x')] + chk,
          end=[f'buffer_store_dwordx2 {vr(Q(4), 2)}, v{VPST}, {WS}, s{S_KMS} offen sc1',
               f's_add_u32 s{S_KMS}, s{S_KMS}, {32*2048}\ns_add_u32 s{S_VXS}, s{S_VXS}, {32*8192}\ns_add_u32 s{S_TCH}, s{S_TCH}, {32*8192}'])
        a.wait_lgkm('x')
        a('s_barrier   ; B2')
        self.stamp('B2')
        ring = [6, 7, 8, 9]; QT = [2, 3, 5, 4]
        stream = []
        for k in range(4): stream += [('x', 0, k), ('x', 1, k)]
        for k in range(4): stream += [('m', k)]
        def rdop(i):
            q = ring[i % 4]; o = stream[i]
            if o[0] == 'x': rdKX(q, o[1], o[2])
            else: rdTRk(q, VTRK, o[1])
        rdTRk(QT[0], VTR, 0, XQO); rdTRk(QT[1], VTR, 1, XQO)
        V(8, 1, None, mid=[lambda: rdTRk(QT[2], VTR, 2, XQO)], end=[lambda: rdTRk(QT[3], VTR, 3, XQO)])
        MX, TT = Q(2), Q(2) + 1
        S = [Q(0) + r for r in range(4)] + [Q(1) + r for r in range(4)] + [Q(12) + r for r in range(4)]
        def b1(y): a(f'ds_read2st64_b32 {vr(Q(6) + 2*y, 2)}, v{VVX} offset0:{2*y} offset1:{2*y + 1}', tag=('q', 6))
        am = lambda d, x, y, z: f'v_max3_f32 v{d}, {x}, |v{y}|, |v{z}|'
        b2 = [f'v_cvt_pk_bf16_f32 v{Q(8 + r//2) + r%2}, v{Q(10)+r}, v{Q(11)+r}' for r in range(4)]
        for i, o in enumerate(stream):
            k = o[-1]
            wq(ring[i % 4]); wq(QT[k])
            acc = o[1] if o[0] == 'x' else 12
            mfma(acc, ring[i % 4], QT[k], k == 0)
            if i + 4 < 12: rdop(i + 4)
            if i == 8: a('s_waitcnt vmcnt(3)', w=[('v', VVX)]); b1(0); b1(1)
            if i == 9: b1(2); b1(3); a(am(MX, f'|v{S[0]}|', S[1], S[2]))
            if i == 10: rdC(3, L_CHALF); zero(5); a(am(MX, f'v{MX}', S[3], S[4]))
            if i == 11: zero(4); a(am(MX, f'v{MX}', S[5], S[6]))
        self.stamp('S')
        e = lambda r: f'v_exp_f32 v{r}, v{r}'
        for x in b2: a(x)
        a(f'ds_write2st64_b32 v{VVX}, v{Q(8)}, v{Q(8)+1} offset0:0 offset1:1', tag='xvw')
        a(f'ds_write2st64_b32 v{VVX}, v{Q(9)}, v{Q(9)+1} offset0:2 offset1:3', tag='xvw')
        rdW(10, ('z', 1))
        a(am(MX, f'v{MX}', S[7], S[8])); a(am(TT, f'|v{S[9]}|', S[10], S[11]))
        a(f'v_max_f32 v{TT}, v{MX}, v{TT}\nv_cmp_nge_f32 vcc, 0x42800000, v{TT}')
        a(f's_cbranch_vccnz L_mx{sfx}\nL_mxk{sfx}:', w=[('v', r) for r in S + [MX, TT]])
        for r in S[:8]: a(e(r))
        a(f"""
        v_cvt_pk_bf16_f32 v{Q(0)}, v{Q(0)}, v{Q(0)+1}
        v_cvt_pk_bf16_f32 v{Q(0)+1}, v{Q(0)+2}, v{Q(0)+3}
        v_cvt_pk_bf16_f32 v{Q(0)+2}, v{Q(1)}, v{Q(1)+1}
        v_cvt_pk_bf16_f32 v{Q(0)+3}, v{Q(1)+2}, v{Q(1)+3}
        """)
        wq(4)
        a(e(S[8]))
        mfma(1, 0, 3, True)
        a(e(S[9]))
        mfma(1, 0, 3, False)
        a(e(S[10]))
        smf(4, 0, q8(6))
        a(e(S[11]))
        a(f'v_cvt_pk_bf16_f32 v{Q(5)}, v{S[8]}, v{S[9]}\nv_cvt_pk_bf16_f32 v{Q(5)+2}, v{S[10]}, v{S[11]}')
        zero(12)
        mfma(1, 5, 3, False)
        smf(4, 5, q8(8))
        self.stamp('PV')
        zero(5); rdW(2, ('z', 0))
        a(f'v_subrev_u32 v{Q(0)}, {XQO}, v{VXW}')
        for r in range(4): a(f'v_rcp_f32 v{Q(1)+r}, v{Q(1)+r}')
        for r in range(4): a(f'v_mul_f32 v{Q(4)+r}, v{Q(4)+r}, v{Q(1)+r}')
        for x in pack(4): a(x)
        a(f'ds_write2_b32 v{Q(0)}, v{Q(4)}, v{Q(4)+1} offset0:0 offset1:80', tag='x')
        for r in range(4): a(f'v_mov_b32 v{Q(4)+r}, 0')
        a.wait_lgkm('x')
        a('s_barrier   ; B4')
        self.stamp('B4')
        a(f's_cmp_eq_u32 s{S_STEP}, {self.nsteps - 1}\ns_cbranch_scc1 L_chain_last{stf.replace(" ", "")}', w=[('v', r) for r in range(Q(6), Q(10))])
        rdTRk(6, VTR, 0); rdTRk(7, VTR, 1); rdTRk(8, VTR, 2); rdTRk(9, VTR, 3)
        def post(acc, pi):
            return pack(acc) + [settag(Q(acc)), f'buffer_store_dwordx2 {vr(Q(acc), 2)}, v{VPST}, {WS}, s{S_PART} offen offset:{512*pi} {stf}']
        Z = Q(4)
        zp = [f'v_permlane32_swap_b32 v{Z}, v{Z+2}', f'v_permlane32_swap_b32 v{Z+1}, v{Z+3}',
              f'v_add_f32 v{Z}, v{Z}, v{Z+2}', f'v_add_f32 v{Z+1}, v{Z+1}, v{Z+3}',
              f'v_cvt_pk_bf16_f32 v{Z}, v{Z}, v{Z+1}', f'v_mov_b32 v{Z+1}, v{Z}',
              f'v_permlane32_swap_b32 v{Z}, v{Z+1}', settag(Z),
              f's_mov_b64 exec, s[{S_LO}:{S_LO+1}]\nbuffer_store_dwordx2 {vr(Z, 2)}, v{VPST}, {WS}, s{S_PART} offen offset:2048 {stf}\ns_mov_b64 exec, -1']
        p0, p1, p2 = post(12, 0), post(5, 1), post(12, 2)
        W_ = lambda pi, k: wreg(('o', pi, k))
        seq = [(12, 6 + k, W_(0, k)) for k in range(4)] + [(5, 6 + k, W_(1, k)) for k in range(4)] + [(4, 0, q8(2)), (4, 1, q8(10)),
               (12, 6, W_(2, 0)), (12, 8, W_(2, 2)), (12, 7, q8(2)), (12, 9, q8(10)),
               (5, 6, W_(3, 0)), (5, 8, W_(3, 2)), (5, 7, q8(2)), (5, 9, q8(10))]
        need = {0: [6], 1: [7], 2: [8], 3: [9], 8: [0], 9: [1], 10: [12], 12: [2], 13: [10], 14: [5], 16: [2], 17: [10]}
        kd = self.kx_dma()
        g = {1: [lambda: rdTRk(0, VTRZ, 0)], 2: [lambda: rdTRk(1, VTRZ, 1), kd[0]], 3: [kd[2]], 4: [kd[3], kd[4]], 5: p0[0:3], 6: p0[3:] + [lambda: zero(12)],
             8: [lambda: rdW(2, ('o', 2, 1))], 9: [lambda: rdW(10, ('o', 2, 3))] + p1[0:3], 10: p1[3:] + [lambda: zero(5)],
             11: zp[0:2], 12: [lambda: rdW(2, ('o', 3, 1))] + zp[2:4], 13: [lambda: rdW(10, ('o', 3, 3))] + zp[4:6],
             14: zp[6:8], 15: [zp[8], p2[0]], 16: p2[1:3], 17: p2[3:]}
        for i, (acc, A, B) in enumerate(seq):
            for q in need.get(i, []): wq(q)
            smf(acc, A, B)
            for x in g.get(i, []): do(x)
        a(f's_mov_b32 s{S_IOF}, s{S_VMS}\ns_add_u32 s{S_VMS}, s{S_VMS}, {32*4096}\ns_mov_b32 s{S_SPIN}, 0')
        for x in post(5, 3): a(x)
        A_[0] = real
        self.items = rec.items
        for it in rec.items:
            if (it.barrier and it.lines[-1].endswith('B1b')) or it.lines[-1].startswith('L_rak') or (it.lines[0] in ('s_waitcnt vmcnt(0)', 's_waitcnt vmcnt(3)') and ('v', VVX) not in it.w): it.pin = 1
            if it.vm and 'dwordx2' in it.lines[0] and f's{S_PART} offen' in it.lines[0] and ('offset:0' in it.lines[0] or 'offset:512' in it.lines[0]): it.early = 1
        self.pred = sched.deps(rec.items, region_of)
        order = sched.order_from_keys(rec.items, self.pred, self.opt['keys']) if self.opt.get('keys') else list(range(len(rec.items)))
        assert sorted(order) == list(range(len(rec.items))) and sched.legal(order, self.pred)
        sched.emit(real, rec.items, order)
        real.reset_counters()
        a(f's_cmp_eq_u32 s{S_W}, 0')
        self.stamp('Wo')
        tb = '0x2a' if otag else '0xa8'
        if self.opt.get('noexch'):
            self.prep_p1(otag)
            a(f's_waitcnt vmcnt(0)\ns_branch L_next{sfx}')
        RA, RB = [6, 7, 8, 9], [0, 1, 10, 11]
        T = Q(4) + 2
        a(f's_cbranch_scc1 L_rgo{sfx}\ns_cmp_eq_u32 s{S_HAS}, 0\ns_cbranch_scc0 L_rd1{sfx}\ns_barrier\ns_branch L_mre{sfx}\nL_rd1{sfx}:')
        delay(self.opt.get('d1', 32))
        a(f'L_rgo{sfx}:')
        delay(self.opt.get('d0', 0))
        def rload(R, M):
            for i in range(4):
                if M: a(f's_mov_b64 exec, s[{M+2*i}:{M+2*i+1}]')
                a(f'buffer_load_dwordx4 {q4(R[i])}, v{VRD}, {WS}, s{S_RD+i} offen sc1')
            if M: a('s_mov_b64 exec, -1')
        def rcheck(R, M, w):
            for i in range(4):
                a(f's_waitcnt vmcnt({w + 3 - i})')
                mfma(3, R[i], 2, i == 0)
                a(f'v_bitop3_b32 v{T + i%2}, v{Q(R[i])}, v{Q(R[i])+2}, 1 bitop3:{tb}')
                a(f'v_cmp_ne_u32 s[{M+2*i}:{M+2*i+1}], 0, v{T + i%2}')
            a(f"""
            s_or_b64 vcc, s[{M}:{M+1}], s[{M+2}:{M+3}]
            s_or_b64 vcc, vcc, s[{M+4}:{M+5}]
            s_or_b64 vcc, vcc, s[{M+6}:{M+7}]
            s_cbranch_scc0 L_rgot{sfx}
            """)
        rload(RA, None)
        a('s_barrier')
        for jj in range(4): a(f'v_cndmask_b32 v{Q(2)+jj}, 0, v{VBD}, s[{S_SEL+2*jj}:{S_SEL+2*jj+1}]')
        if self.opt.get('rsingle'):
            a(f'L_rpoll{sfx}:')
            rcheck(RA, S_MA, 0); rload(RA, S_MA)
        else:
            delay(self.opt.get('g1', 32))
            rload(RB, None)
            a(f'L_rpoll{sfx}:')
            rcheck(RA, S_MA, 4); rload(RA, S_MA)
            rcheck(RB, S_MB, 4); rload(RB, S_MB)
        a(f"""
        s_add_u32 s{S_SPIN}, s{S_SPIN}, 1
        s_cmp_gt_u32 s{S_SPIN}, 0x40000
        s_cbranch_scc0 L_rpoll{sfx}
        s_branch L_chain_fail
        """)
        a(f'L_ra{sfx}:\ns_add_u32 s{S_C1}, s{S_C1}, 0x10000')
        mround(5)
        a(f's_branch L_rak{sfx}')
        a(f"""
        L_rb{sfx}:
        s_add_u32 s{S_C2}, s{S_C2}, 0x10000
        s_mov_b32 s{S_SPIN}, 0
        L_rbl{sfx}:
        """)
        mround(5)
        a(f"""
        s_add_u32 s{S_C2}, s{S_C2}, 0x1000000
        s_add_u32 s{S_SPIN}, s{S_SPIN}, 1
        s_cmp_gt_u32 s{S_SPIN}, 0x40000
        s_cbranch_scc1 L_chain_fail
        s_waitcnt vmcnt(0)
        v_and_b32 v{TT3}, 1, v{TG}
        v_cmp_ne_u32 vcc, {par}, v{TT3}
        s_cbranch_vccnz L_rbl{sfx}
        s_branch L_rbk{sfx}
        """)
        a(f"""
        L_mx{sfx}:
        v_max3_f32 v{MX}, v{S[0]}, v{S[1]}, v{S[2]}
        v_max3_f32 v{MX}, v{MX}, v{S[3]}, v{S[4]}
        v_max3_f32 v{MX}, v{MX}, v{S[5]}, v{S[6]}
        v_max3_f32 v{MX}, v{MX}, v{S[7]}, v{S[8]}
        v_max3_f32 v{MX}, v{MX}, v{S[9]}, v{S[10]}
        v_max_f32 v{MX}, v{MX}, v{S[11]}
        v_mov_b32 v{TT}, v{MX}
        v_permlane16_swap_b32 v{MX}, v{TT}
        v_max_f32 v{MX}, v{MX}, v{TT}
        v_mov_b32 v{TT}, v{MX}
        v_permlane32_swap_b32 v{MX}, v{TT}
        v_max_f32 v{MX}, v{MX}, v{TT}
        """)
        for r in S: a(f'v_sub_f32 v{r}, v{r}, v{MX}')
        a(f's_branch L_mxk{sfx}')
        a(f"""
        L_redo{stf.replace(" ", "") + str(1 - par)}:
        s_waitcnt vmcnt(0) lgkmcnt(0)
        s_barrier
        s_sub_u32 s{S_STEP}, s{S_STEP}, 1
        s_sub_u32 s{S_HIST}, s{S_HIST}, 9216
        s_mov_b32 s{S_SPIN}, 0
        s_mov_b32 s{S_IOF}, 0xf0000000
        s_branch L_mre{sfx}
        L_rgot{sfx}:
        """)
        self.stamp('rgot')
        D = Q(3)
        a(f"""
        v_permlane32_swap_b32 v{D}, v{D+2}
        v_permlane32_swap_b32 v{D+1}, v{D+3}
        v_add_f32 v{D}, v{D}, v{D+2}
        v_add_f32 v{D+1}, v{D+1}, v{D+3}
        v_cvt_pk_bf16_f32 v{D}, v{D}, v{D+1}
        v_mov_b32 v{D+1}, v{D}
        s_add_u32 s{S_C1}, s{S_C1}, s{S_SPIN}
        s_mov_b32 s{S_SPIN}, 0
        v_permlane32_swap_b32 v{D}, v{D+1}
        {settag(D)}
        s_mov_b64 exec, s[{S_MSK}:{S_MSK+1}]
        buffer_store_dwordx2 {vr(D, 2)}, v{VPST}, {WS}, s{S_MST} offen {stf}
        """)
        self.stamp('mst')
        if self.debug:
            a(f'buffer_store_dwordx2 {vr(D, 2)}, v{VPST}, {WS}, s{S_HIST} offen')
        a(f's_mov_b64 exec, -1')
        a(f'L_mre{sfx}:')
        self.prep_a(otag)
        a(f's_cmp_eq_u32 s{S_W}, 0\ns_cbranch_scc1 L_ma{sfx}')
        if not self.opt.get('rsingle'): a(f's_waitcnt vmcnt(1)')
        self.prep_b()
        a(f's_cmp_eq_u32 s{S_W}, 1\ns_cbranch_scc1 L_mb{sfx}\ns_waitcnt vmcnt(0)\ns_branch L_next{sfx}\nL_mb{sfx}:')
        a(f's_mov_b32 s{S_W1}, 1')
        if not self.opt.get('post'):
            delay(self.opt.get('d3', 0))
            mround(5)
        a(f's_branch L_next{sfx}\nL_ma{sfx}:')
        if not self.opt.get('rsingle'): a(f's_waitcnt vmcnt(1)')
        self.prep_b()
        delay(self.opt.get('d2', 0))
        T = Q(1)
        self.stamp('r0')
        a(f'L_mloop{sfx}:')
        mround(4)
        if self.opt.get('force_redo'):
            a(f's_cmp_eq_u32 s{S_IOF}, 0xf0000000\ns_cbranch_scc0 L_mgot{sfx}')
        a(f"""
        s_waitcnt vmcnt(4)
        v_and_b32 v{T}, 1, v{TG}
        v_cmp_ne_u32 vcc, {otag}, v{T}
        s_cbranch_vccz L_mgot{sfx}
        s_add_u32 s{S_C2}, s{S_C2}, 1
        s_add_u32 s{S_SPIN}, s{S_SPIN}, 1
        s_cmp_gt_u32 s{S_SPIN}, 0x40000
        s_cbranch_scc0 L_mloop{sfx}
        s_branch L_chain_fail
        L_mgot{sfx}:
        """)
        self.stamp('tagok')
        a(f"""
        s_waitcnt vmcnt(0)
        L_next{sfx}:
        """)
        self.stamp('mgot')
        if self.stamps and par == 0:
            lab = a.uid('Lst')
            a(f's_cmp_eq_u32 s{S_STEP}, 20\ns_cbranch_scc0 {lab}\ns_waitcnt lgkmcnt(0)')
            a(f's_lshl_b32 s{S_T0}, s{S_H}, 2\ns_add_u32 s{S_T0}, s{S_T0}, s{S_W}\ns_lshl_b32 s{S_T0}, s{S_T0}, 7\ns_add_u32 s{S_T0}, s{S_T0}, {WS_STAMP}')
            a(f's_mov_b64 exec, 1')
            for i in range(len(self.stamps)):
                a(f'v_mov_b32 v12, s{S_ST+2*i}\nbuffer_store_dword v12, off, {WS}, s{S_T0} offset:{4*i}')
            for i, r in enumerate((S_C1, S_C2, 96, 97)):
                a(f'v_mov_b32 v12, s{r}\nbuffer_store_dword v12, off, {WS}, s{S_T0} offset:{64+4*i}')
            a(f's_mov_b64 exec, -1\n{lab}:')
        if self.opt.get('st') and par == 1:
            lab = a.uid('Lpr')
            a(f"""
            s_lshl_b32 s{S_T0}, s{S_H}, 2
            s_add_u32 s{S_T0}, s{S_T0}, s{S_W}
            s_cmp_eq_u32 s{S_T0}, 3
            s_cbranch_scc0 {lab}
            s_memrealtime s[{S_T2}:{S_T3}]
            s_memtime s[94:95]
            s_lshl_b32 s{S_T0}, s{S_STEP}, 2
            s_add_u32 s{S_T0}, s{S_T0}, {WS_STAMP + 32768}
            s_waitcnt lgkmcnt(0)
            v_mov_b32 v12, s{S_T2}
            v_mov_b32 v13, s94
            s_mov_b64 exec, 1
            buffer_store_dwordx2 v[12:13], off, {WS}, s{S_T0}
            s_mov_b64 exec, -1
            {lab}:
            """)
        a(f"""
        s_add_u32 s{S_STEP}, s{S_STEP}, 1
        s_add_u32 s{S_HIST}, s{S_HIST}, 9216
        s_waitcnt lgkmcnt(0)
        """)
        a.reset_counters()
    def sig_group(self):
        self.a(f"""
        s_lshr_b32 s{S_T1}, s{S_T0}, 3
        s_lshl_b32 s{S_T1}, s{S_T1}, 5
        s_and_b32 s{S_T0}, s{S_T0}, 4
        s_add_u32 s{S_T0}, s{S_T0}, s{S_T1}
        s_mov_b64 exec, 1
        v_mov_b32 v{Q(1)+3}, 1
        buffer_atomic_add v{Q(1)+3}, off, s[{S_DBG}:{S_DBG+3}], s{S_T0} offset:{D_SG(0)}
        s_mov_b64 exec, -1
        """)
    def loop(self, stf):
        a = self.a
        sfx = stf.replace(' ', '')
        a(f'L_step{sfx}:')
        self.step(stf, 0)
        self.step(stf, 1)
        a(f's_branch L_step{sfx}')
        a(f'L_chain_last{sfx}:')
        a(f"""
        v_add_u32 v{Q(8)}, s{S_XVO}, v{VB}
        ds_read_b128 {q4(8)}, v{Q(8)}
        s_waitcnt lgkmcnt(0)
        buffer_store_dwordx4 {q4(8)}, v{VB}, {WS}, s{S_VMS} offen sc1
        s_waitcnt vmcnt(0)
        """)
        if self.opt.get('sync'):
            a(f's_barrier\nv_mov_b32 v{Q(8)}, 64\ns_cmp_eq_u32 s{S_W}, 3\ns_cbranch_scc0 L_chain_done\ns_mov_b64 exec, 1\nbuffer_store_dword v{Q(8)}, off, {WS}, s{S_FLG} sc1\ns_waitcnt vmcnt(0)')
        a('s_branch L_chain_done')
```

```python
from asmlib import *
from layout import *

S_WS = 4; S_DBG = 8
S_MT, S_W, S_GRP = 12, 13, 14
S_X = 16
S_A = 20; S_B = 24
S_PQ, S_PK, S_PV, S_PG, S_PU = 28, 30, 32, 34, 36
S_T0, S_T1, S_T2, S_T3 = 38, 39, 40, 41
S_FB, S_FC, S_FOFF, S_FSTEP, S_FSLOT = 42, 43, 44, 45, 46
S_CB, S_CC = 47, 48
S_BLK, S_EOFF = 49, 50
S_GW = 52
S_FADV = 57
S_PEND = 58
S_RSL = 56
WS = f's[{S_WS}:{S_WS+3}]'
NSLOT = 8
V_LQ, V_LG, V_F = 1, 2, 3
V_R = 4
V_RC = 8
V_EK, V_EV, V_EH, V_EW, V_SG = 12, 13, 14, 15, 16
V_T = 18
V_AF = 32
V_XX = 64
V_ACC = 96
V_E = 224
def xf(t, ks):
    n = t * 36 + ks
    return vr(4 * n, 4, 'a') if n < 64 else vr(V_XX + 4 * (n - 64), 4)
def acc(t, ct): return V_ACC + 16 * (4 * t + ct)

class Gemm1:
    def __init__(self, a, stf='', nblk=6, sync=False):
        self.a = a; self.stf = stf; self.nblk = nblk; self.sync = sync
    def blockid(self, dst, i):
        self.a(f's_mul_i32 s{dst}, s{i}, 28\ns_add_u32 s{dst}, s{dst}, s{S_GRP}')
        if getattr(self, 'rot', 0): self.a(f's_add_u32 s{dst}, s{dst}, {self.rot}\ns_cmp_ge_u32 s{dst}, 168\ns_cselect_b32 s{S_T3}, 168, 0\ns_sub_u32 s{dst}, s{dst}, s{S_T3}')
    def fetch_setup(self):
        a = self.a
        lg = a.uid('Lg'); le = a.uid('Le')
        self.blockid(S_T0, S_FB)
        a(f'''
        s_cmp_ge_u32 s{S_T0}, 96
        s_cbranch_scc1 {lg}
        s_lshr_b32 s{S_T1}, s{S_T0}, 5
        s_cmp_eq_u32 s{S_T1}, 0
        s_cselect_b64 s[{S_A}:{S_A+1}], s[{S_PK}:{S_PK+1}], s[{S_PV}:{S_PV+1}]
        s_cmp_eq_u32 s{S_T1}, 2
        s_cselect_b64 s[{S_A}:{S_A+1}], s[{S_PQ}:{S_PQ+1}], s[{S_A}:{S_A+1}]
        s_mov_b32 s{S_A+2}, 4718592
        s_and_b32 s{S_T0}, s{S_T0}, 31
        s_lshl_b32 s{S_FOFF}, s{S_T0}, 8
        s_lshl_b32 s{S_T1}, s{S_W}, 17
        s_add_u32 s{S_FOFF}, s{S_FOFF}, s{S_T1}
        s_mov_b32 s{S_FSTEP}, {4*8192}
        s_mov_b32 s{S_FADV}, {13*4*8192}
        v_mov_b32 v{V_F}, v{V_LQ}
        s_branch {le}
        {lg}:
        s_cmp_lt_u32 s{S_W}, 2
        s_cselect_b64 s[{S_A}:{S_A+1}], s[{S_PG}:{S_PG+1}], s[{S_PU}:{S_PU+1}]
        s_mov_b32 s{S_A+2}, 5308416
        s_sub_u32 s{S_T0}, s{S_T0}, 96
        s_lshl_b32 s{S_FOFF}, s{S_T0}, 7
        s_and_b32 s{S_T1}, s{S_W}, 1
        s_mul_i32 s{S_T1}, s{S_T1}, {32*9216}
        s_add_u32 s{S_FOFF}, s{S_FOFF}, s{S_T1}
        s_mov_b32 s{S_FSTEP}, {8*9216}
        s_mov_b32 s{S_FADV}, {5*8*9216}
        v_mov_b32 v{V_F}, v{V_LG}
        {le}:
        ''')
    def fetch_items(self):
        it = []
        for j in range(4):
            it.append(f's_add_u32 m0, s{S_FSLOT}, {1024*j}\n' + (f's_add_u32 s{S_FOFF}, s{S_FOFF}, s{S_FSTEP}' if j else 's_nop 0') +
                      f'\nbuffer_load_dwordx4 v{V_F}, s[{S_A}:{S_A+3}], s{S_FOFF} offen {getattr(self, "ldf", "")} lds')
        it.append(f's_add_u32 s{S_FOFF}, s{S_FOFF}, s{S_FADV}\ns_add_u32 s{S_FSLOT}, s{S_FSLOT}, 16384\ns_and_b32 s{S_FSLOT}, s{S_FSLOT}, {NSLOT*16384 - 1}')
        return it
    def fetch_next_block(self):
        a = self.a
        a(f's_add_u32 s{S_FB}, s{S_FB}, 1')
        self.fetch_setup()
        a(f's_cmp_lt_u32 s{S_FB}, {self.nblk}\ns_cselect_b32 s{S_A+2}, s{S_A+2}, 0')
    def setup(self):
        a = self.a
        for r, ka in ((S_X, KA_X), (S_PQ, KA_WQ), (S_PK, KA_WK), (S_PV, KA_WV), (S_PG, KA_WG), (S_PU, KA_WU), (S_GW, KA_GW)):
            a(f's_load_dwordx2 s[{r}:{r+1}], s[0:1], {ka}')
        a(f'''
        s_waitcnt lgkmcnt(0)
        s_mov_b32 s{S_X+2}, 2359296
        s_mov_b32 s{S_X+3}, 0x00020000
        s_mov_b32 s{S_GW+2}, 1152
        s_mov_b32 s{S_GW+3}, 0x00020000
        s_mov_b64 s[{S_A}:{S_A+1}], s[{S_PK}:{S_PK+1}]
        s_mov_b32 s{S_A+2}, 0
        s_mov_b32 s{S_A+3}, 0x00020000
        ''')
        L, T0, T1, T2, T3 = V_T, V_T + 1, V_T + 2, V_T + 3, V_T + 4
        a(f'''
        v_and_b32 v{L}, 63, v0
        v_lshrrev_b32 v{T0}, 4, v{L}
        v_and_b32 v{T1}, 15, v{L}
        v_lshlrev_b32 v{T2}, 2, v{T0}
        v_xor_b32 v{T1}, v{T1}, v{T2}
        v_lshlrev_b32 v{T1}, 4, v{T1}
        v_lshl_add_u32 v{V_LQ}, v{T0}, 13, v{T1}
        v_lshrrev_b32 v{T0}, 3, v{L}
        v_and_b32 v{T1}, 7, v{L}
        v_bfe_u32 v{T2}, v{L}, 4, 1
        v_lshlrev_b32 v{T2}, 2, v{T2}
        v_xor_b32 v{T1}, v{T1}, v{T2}
        v_lshlrev_b32 v{T1}, 4, v{T1}
        v_mul_u32_u24 v{T0}, 9216, v{T0}
        v_add_u32 v{V_LG}, v{T0}, v{T1}
        s_lshl_b32 s{S_FSLOT}, s{S_W}, 12
        s_mov_b32 s{S_FB}, 0
        s_mov_b32 s{S_FC}, 0
        ''')
        self.fetch_setup()
        for x in self.fetch_items(): a(x)
        VO = V_ACC
        for j in range(18):
            a(f'''
            v_add_u32 v{T0}, {64*j}, v{L}
            v_mul_u32_u24 v{T1}, 911, v{T0}
            v_lshrrev_b32 v{T1}, 16, v{T1}
            v_bfe_u32 v{T2}, v{T1}, 1, 3
            v_xor_b32 v{T0}, v{T0}, v{T2}
            v_lshlrev_b32 v{VO + j}, 4, v{T0}
            ''')
        a(f'''
        s_lshl_b32 s{S_T0}, s{S_MT}, 2
        s_add_u32 s{S_T0}, s{S_T0}, s{S_W}
        s_mul_i32 s{S_T0}, s{S_T0}, {64*1152}
        s_mul_i32 s{S_T1}, s{S_W}, 36864
        s_add_u32 s{S_T1}, s{S_T1}, 16384
        ''')
        def xdma(r):
            for j in range(18):
                a(f's_add_u32 m0, s{S_T1}, {(r % 2) * 18432 + 1024*j}')
                a(f's_add_u32 s{S_T2}, s{S_T0}, {r * 18432}' if j == 0 else 's_nop 0')
                a(f'buffer_load_dwordx4 v{VO + j}, s[{S_X}:{S_X+3}], s{S_T2} offen lds', tag=('x', r))
        xdma(0); xdma(1)
        XR = V_ACC + 20
        a(f'''
        v_bfe_u32 v{T0}, v{L}, 2, 1
        v_bfe_u32 v{T1}, v{L}, 4, 1
        v_lshlrev_b32 v{T1}, 2, v{T1}
        v_lshl_add_u32 v{T0}, v{T0}, 3, v{T1}
        v_and_b32 v{T1}, 3, v{L}
        v_add_u32 v{T0}, v{T0}, v{T1}
        v_lshrrev_b32 v{T2}, 1, v{T0}
        v_mul_u32_u24 v{T0}, 1152, v{T0}
        v_add_u32 v{T0}, s{S_T1}, v{T0}
        v_lshrrev_b32 v{T1}, 5, v{L}
        v_xor_b32 v{T2}, v{T2}, v{T1}
        ''')
        for m in range(4):
            a(f'v_xor_b32 v{T3}, {2*m}, v{T2}\nv_lshl_add_u32 v{XR + m}, v{T3}, 4, v{T0}')
        a(f'v_lshlrev_b32 v{T2}, 4, v{T1}')
        for r in range(4):
            a.wait_vm(('x', r))
            a(f's_mov_b32 exec_lo, {"0xff00ff00" if r % 2 else "0x00ff00ff"}\ns_mov_b32 exec_hi, {"0xff00ff00" if r % 2 else "0x00ff00ff"}')
            for ks in range(36):
                a(f'ds_read_b128 {xf(r // 2, ks)}, v{XR + ks % 4} offset:{(r % 2) * 18432 + 128 * (ks // 4)}')
                if ks % 12 == 11: a('s_waitcnt lgkmcnt(6)')
            a('s_mov_b64 exec, -1\ns_waitcnt lgkmcnt(0)')
            if r + 2 < 4: xdma(r + 2)
        a('s_barrier')
        for c in range(5):
            for x in self.fetch_items(): a(x)
        a.reset_counters()
        a(f'''
        v_bfe_u32 v{T0}, v{L}, 4, 1
        v_lshrrev_b32 v{T1}, 5, v{L}
        v_and_b32 v{T2}, 15, v{L}
        v_lshlrev_b32 v{V_EK}, 10, v{T0}
        v_lshl_add_u32 v{V_EK}, v{T1}, 8, v{V_EK}
        v_lshl_add_u32 v{V_EK}, v{T2}, 4, v{V_EK}
        v_bfe_u32 v{T2}, v{L}, 3, 1
        v_and_b32 v{T3}, 3, v{L}
        v_lshl_add_u32 v{T2}, v{T2}, 2, v{T3}
        v_lshlrev_b32 v{V_EV}, 8, v{T2}
        v_bfe_u32 v{T2}, v{L}, 2, 1
        v_lshl_add_u32 v{T2}, v{T2}, 1, v{T0}
        v_lshl_add_u32 v{V_EV}, v{T2}, 6, v{V_EV}
        v_lshl_add_u32 v{V_EV}, v{T1}, 4, v{V_EV}
        s_lshl_b32 s{S_T0}, s{S_W}, 13
        s_add_u32 s{S_T0}, s{S_T0}, 131072
        v_add_u32 v{V_EV}, s{S_T0}, v{V_EV}
        v_lshlrev_b32 v{V_EH}, 4, v{L}
        v_add_u32 v{V_EW}, s{S_T0}, v{V_EH}
        ''')
        a.reset_counters()
    def gate(self):
        a = self.a
        L, T0, T1, T2, T3 = V_T, V_T + 1, V_T + 2, V_T + 3, V_T + 4
        LG = 131072
        a(f'''
        s_lshl_b32 s{S_T0}, s{S_W}, 13
        s_add_u32 m0, s{S_T0}, {LG}
        v_lshrrev_b32 v{T1}, 5, v{L}
        v_lshl_add_u32 v{T1}, v{T1}, 4, s{S_T0}
        buffer_load_dwordx4 v{V_EH}, s[{S_GW}:{S_GW+3}], 0 offen lds
        buffer_load_dwordx4 v{V_EH}, s[{S_GW}:{S_GW+3}], 0 offen offset:1024 lds
        v_add_u32 v{T1}, {LG}, v{T1}
        s_waitcnt vmcnt(0)
        ''')
        gf = lambda ks: vr(V_ACC + 4*ks if ks < 32 else V_AF + 4*(ks-32), 4)
        for ks in range(36):
            a(f'ds_read_b128 {gf(ks)}, v{T1} offset:{32*ks}')
            if ks % 12 == 11: a('s_waitcnt lgkmcnt(0)')
        for t in range(2):
            for ks in range(36):
                a(f'v_mfma_f32_32x32x16_bf16 {vr(V_E + 16*t, 16)}, {gf(ks)}, {xf(t, ks)}, {vr(V_E + 16*t, 16) if ks else 0}')
        for t in range(2):
            a(f'''
            v_mul_f32 v{T2}, 0x3fb8aa3b, v{V_E + 16*t}
            v_exp_f32 v{T3}, v{T2}
            v_exp_f32_e64 v{T2}, -v{T2}
            v_add_f32 v{T3}, 1.0, v{T3}
            v_add_f32 v{T2}, 1.0, v{T2}
            v_rcp_f32 v{V_SG + t}, v{T3}
            v_rcp_f32 v{V_T + 5 + t}, v{T2}
            ''')
        lab = a.uid('Lng')
        a(f'''
        s_cmp_eq_u32 s{S_GRP}, 0
        s_cbranch_scc0 {lab}
        s_lshl_b32 s{S_T0}, s{S_MT}, 2
        s_add_u32 s{S_T0}, s{S_T0}, s{S_W}
        s_lshl_b32 s{S_T0}, s{S_T0}, 8
        s_add_u32 s{S_T0}, s{S_T0}, {WS_G}
        v_and_b32 v{T0}, 31, v{L}
        v_lshlrev_b32 v{T0}, 2, v{T0}
        buffer_store_dword v{V_T + 5}, v{T0}, {WS}, s{S_T0} offen {self.stf}
        buffer_store_dword v{V_T + 6}, v{T0}, {WS}, s{S_T0} offen offset:128 {self.stf}
        s_waitcnt vmcnt(0)
        {lab}:
        ''')
        a.reset_counters()
    def signal(self):
        a = self.a
        lab = a.uid('Lsig')
        a(f'''
        s_cmp_eq_u32 s{S_W}, 0
        s_cbranch_scc0 {lab}
        s_mov_b64 exec, 1
        v_mov_b32 v{V_T + 7}, s{S_PEND}
        s_lshl_b32 s{S_T3}, s{S_MT}, 5
        buffer_atomic_add v{V_T + 7}, off, s[{S_DBG}:{S_DBG+3}], s{S_T3} offset:{D_MT(0)}
        s_mov_b64 exec, -1
        {lab}:
        s_mov_b32 s{S_PEND}, 0
        ''')
    def read_bases(self, glu):
        a = self.a
        L, A_, T0, T1 = V_T, V_T + 1, V_T + 2, V_T + 3
        a(f'''
        v_bfe_u32 v{A_}, v{L}, 2, 2
        v_lshrrev_b32 v{T0}, 5, v{L}
        v_lshl_add_u32 v{T0}, v{T0}, 3, v{A_}
        v_lshlrev_b32 v{T0}, {7 if glu else 8}, v{T0}
        v_bfe_u32 v{T1}, v{L}, 4, 1
        v_lshl_add_u32 v{T0}, v{T1}, 5, v{T0}
        v_and_b32 v{T1}, 3, v{L}
        v_lshl_add_u32 v{T0}, v{T1}, 3, v{T0}
        ''')
        if glu: a(f'v_lshrrev_b32 v{A_}, 1, v{A_}')
        for ct in range(4):
            a(f'v_xor_b32 v{T1}, {ct % 2 if glu else ct}, v{A_}')
            a(f'v_lshl_add_u32 v{V_R + ct}, v{T1}, 6, v{T0}')
            if glu and ct >= 2: a(f'v_add_u32 v{V_R + ct}, 8192, v{V_R + ct}')
    def block(self, glu):
        a = self.a
        rs = 128 if glu else 256
        def rd(u, st, i):
            ct, y = i // 2, i % 2
            a(f'ds_read_b64_tr_b16 {vr(V_AF + 16*st + 4*ct + 2*y, 2)}, v{V_RC + ct} offset:{(16*u + 4*y) * rs}', tag=('af', st))
        def newslot():
            return [f'v_add_u32 v{V_RC + ct}, s{S_RSL}, v{V_R + ct}' for ct in range(4)]
        for x in newslot(): a(x)
        for i in range(8): rd(0, 0, i)
        n = 0
        for c in range(9):
            for u in range(4):
                ks = 4 * c + u
                st = n % 2
                side = []
                if u == 0:
                    side = [f's_waitcnt vmcnt({(16 + 8) if c < 5 else 16})\ns_barrier'] + self.fetch_items()
                    side.append(f's_add_u32 s{S_RSL}, s{S_RSL}, 16384\ns_and_b32 s{S_RSL}, s{S_RSL}, {NSLOT*16384 - 1}')
                if u == 1 and c == 2: side = [self.fetch_next_block]
                if u == 1 and c == 5 and self.sync: side = [self.signal]
                a.wait_lgkm(('af', st))
                for i in range(8):
                    ct, t = i // 2, i % 2
                    d = vr(acc(t, ct), 16)
                    a(f'v_mfma_f32_32x32x16_bf16 {d}, {vr(V_AF + 16*st + 4*ct, 4)}, {xf(t, ks)}, {d if ks else 0}')
                    if ks < 35: rd((u + 1) % 4, 1 - st, i)
                    if u == 2 and i % 2 == 1 and c < 8: a(newslot()[i // 2])
                    if side:
                        x = side.pop(0)
                        x() if callable(x) else a(x)
                n += 1
        a.reset_counters()
    def epilogue(self, kind):
        a = self.a
        k = 0
        for t in range(2):
            for ct in range(2 if kind == 'h' else 4):
                D = acc(t, ct)
                if kind == 'h':
                    U = acc(t, ct + 2)
                    for i in range(16): a(f'v_mul_f32 v{D+i}, v{D+i}, v{U+i}')
                    for i in range(16): a(f'v_mul_f32 v{D+i}, v{D+i}, v{V_SG + t}')
                for q in range(2):
                    e = V_E + 4 * (k % 8); k += 1
                    for r in range(4): a(f'v_cvt_pk_bf16_f32 v{e+r}, v{D + 4*q + r}, v{D + 4*q + r + 8}')
                    if kind == 'v':
                        a(f'ds_write_b128 v{V_EV}, {vr(e, 4)} offset:{2048 * ct + 32 * q}')
                        continue
                    if kind == 'kq': v = V_EK; off = 2048 * ct + 512 * q
                    else: v = V_EH; off = 2048 * ct + 1024 * q
                    so = S_EOFF + (1 if off >= 4096 else 0) if kind != 'h' else S_EOFF
                    a(f'buffer_store_dwordx4 {vr(e, 4)}, v{v}, {WS}, s{so} offen offset:{off % 4096} {self.stf}')
            if kind == 'v':
                D = acc(t, 0)
                a('s_waitcnt lgkmcnt(0)')
                for j in range(8): a(f'ds_read_b128 {vr(D + 4*j, 4)}, v{V_EW} offset:{1024*j}')
                for j in range(8):
                    a(f's_waitcnt lgkmcnt({7 - j})')
                    a(f'buffer_store_dwordx4 {vr(D + 4*j, 4)}, v{V_EH}, {WS}, s{S_EOFF + j // 4} offen offset:{1024 * (j % 4)} {self.stf}')
            if t == 0:
                step = 288 * 1024 if kind == 'h' else 32 * 8192
                a(f's_add_u32 s{S_EOFF}, s{S_EOFF}, {step}\ns_add_u32 s{S_EOFF+1}, s{S_EOFF+1}, {step}')
        a.reset_counters()
    def main(self, after_block=None):
        a = self.a
        a(f's_mov_b32 s{S_CB}, 0\ns_mov_b32 s{S_RSL}, 0\ns_waitcnt vmcnt(0)\ns_barrier')
        a(f's_mov_b32 s{S_PEND}, 0')
        a('L_g1_blk:')
        a(f's_cmp_eq_u32 s{S_CB}, 3\ns_cbranch_scc0 L_g1_ng')
        self.gate()
        a('L_g1_ng:')
        self.blockid(S_BLK, S_CB)
        a(f's_cmp_ge_u32 s{S_BLK}, 96\ns_cbranch_scc1 L_g1_glu')
        self.read_bases(False)
        self.block(False)
        a(f'''
        s_lshl_b32 s{S_T0}, s{S_MT}, 2
        s_add_u32 s{S_T0}, s{S_T0}, s{S_W}
        s_lshl_b32 s{S_T0}, s{S_T0}, 19
        s_and_b32 s{S_T1}, s{S_BLK}, 31
        s_lshl_b32 s{S_T1}, s{S_T1}, 13
        s_add_u32 s{S_T0}, s{S_T0}, s{S_T1}
        s_lshr_b32 s{S_T1}, s{S_BLK}, 5
        s_cmp_eq_u32 s{S_T1}, 2
        s_cselect_b32 s{S_T2}, {WS_QP}, {WS_KP}
        s_cmp_eq_u32 s{S_T1}, 1
        s_cselect_b32 s{S_T2}, {WS_VP}, s{S_T2}
        s_add_u32 s{S_EOFF}, s{S_T0}, s{S_T2}
        s_add_u32 s{S_EOFF+1}, s{S_EOFF}, 4096
        s_cmp_eq_u32 s{S_T1}, 1
        s_cbranch_scc1 L_g1_v
        ''')
        self.epilogue('kq')
        a('s_branch L_g1_next\nL_g1_v:')
        self.epilogue('v')
        a('s_branch L_g1_next\nL_g1_glu:')
        self.read_bases(True)
        self.block(True)
        a(f'''
        s_lshl_b32 s{S_T0}, s{S_MT}, 2
        s_add_u32 s{S_T0}, s{S_T0}, s{S_W}
        s_mul_i32 s{S_T0}, s{S_T0}, {2*288*1024}
        s_sub_u32 s{S_T1}, s{S_BLK}, 96
        s_lshl_b32 s{S_T1}, s{S_T1}, 12
        s_add_u32 s{S_T0}, s{S_T0}, s{S_T1}
        s_add_u32 s{S_EOFF}, s{S_T0}, {WS_H}
        ''')
        self.epilogue('h')
        a('L_g1_next:')
        if self.sync:
            a(f'''
            s_mov_b32 s{S_PEND}, 1
            s_cmp_ge_u32 s{S_BLK}, 64
            s_cselect_b32 s{S_PEND}, 0x100, s{S_PEND}
            s_cmp_ge_u32 s{S_BLK}, 96
            s_cselect_b32 s{S_PEND}, 0x10000, s{S_PEND}
            s_cmp_eq_u32 s{S_CB}, 2
            s_cbranch_scc1 L_g1_now
            s_cmp_eq_u32 s{S_CB}, {self.nblk - 1}
            s_cbranch_scc0 L_g1_later
            L_g1_now:
            s_waitcnt vmcnt(0)
            s_barrier
            ''')
            self.signal()
            a('L_g1_later:')
        if after_block: after_block()
        a(f's_add_u32 s{S_CB}, s{S_CB}, 1\ns_cmp_lt_u32 s{S_CB}, {self.nblk}\ns_cbranch_scc1 L_g1_blk')
```

```python
from asmlib import *
from layout import *
S_WS = 4
S_CT, S_W, S_SEG = 12, 13, 14
S_WT = 16
S_OUT = 20
S_T0, S_T1, S_T2, S_T3 = 24, 25, 26, 27
S_LB, S_PAR = 28, 29
WS = f's[{S_WS}:{S_WS+3}]'
V_L16, V_F, V_R, V_OA, V_RW, V_RR = 1, 2, 3, 4, 5, 6
V_T = 8
V_D = 16
V_BP = 32
V_RED = 36
V_WX = 64
V_RING = 96
NRING = 40
L_RED = 131072
def wf(n): return vr(4 * n, 4, 'a') if n < 64 else vr(V_WX + 4 * (n - 64), 4)
class Out:
    def __init__(self, a, part, ldf='', stf=''):
        self.a = a; self.part = part; self.nf = 72 if part == 'h' else 64; self.ldf = ldf; self.stf = stf
    def setup(self):
        a = self.a; nf = self.nf
        L, T0, T1, A_ = V_T, V_T + 1, V_T + 2, V_T + 3
        a(f'''
        s_load_dwordx2 s[{S_WT}:{S_WT+1}], s[0:1], {KA_WD if self.part == 'h' else KA_WO}
        s_load_dwordx2 s[{S_OUT}:{S_OUT+1}], s[0:1], {KA_OUT}
        v_and_b32 v{L}, 63, v0
        v_lshlrev_b32 v{V_L16}, 4, v{L}
        v_lshrrev_b32 v{T0}, 2, v{L}
        v_mul_u32_u24 v{T0}, 1152, v{T0}
        v_and_b32 v{T1}, 3, v{L}
        v_lshl_add_u32 v{V_F}, v{T1}, 4, v{T0}
        s_lshl_b32 s{S_LB}, s{S_W}, 15
        v_bfe_u32 v{A_}, v{L}, 2, 2
        v_and_b32 v{T0}, 1, v{A_}
        v_lshlrev_b32 v{T0}, 4, v{T0}
        v_lshrrev_b32 v{T1}, 5, v{L}
        v_lshl_add_u32 v{T0}, v{T1}, 2, v{T0}
        v_lshrrev_b32 v{T1}, 1, v{A_}
        v_add_u32 v{T0}, v{T0}, v{T1}
        v_lshlrev_b32 v{T0}, 6, v{T0}
        v_bfe_u32 v{T1}, v{L}, 4, 1
        v_lshl_add_u32 v{T0}, v{T1}, 5, v{T0}
        v_and_b32 v{T1}, 1, v{L}
        v_lshl_add_u32 v{T0}, v{T1}, 4, v{T0}
        v_bfe_u32 v{T1}, v{L}, 1, 1
        v_lshl_add_u32 v{T0}, v{T1}, 3, v{T0}
        v_add_u32 v{V_R}, s{S_LB}, v{T0}
        s_lshl_b32 s{S_T0}, s{S_W}, 12
        s_add_u32 s{S_T0}, s{S_T0}, {L_RED}
        v_add_u32 v{V_RW}, s{S_T0}, v{V_L16}
        s_lshl_b32 s{S_T0}, s{S_W}, 10
        s_add_u32 s{S_T0}, s{S_T0}, {L_RED}
        v_add_u32 v{V_RR}, s{S_T0}, v{V_L16}
        v_bfe_u32 v{T0}, v{L}, 2, 2
        v_bfe_u32 v{T1}, v{L}, 4, 1
        v_lshlrev_b32 v{T1}, 2, v{T1}
        v_lshl_add_u32 v{T0}, v{T0}, 3, v{T1}
        v_and_b32 v{T1}, 3, v{L}
        v_add_u32 v{T0}, v{T0}, v{T1}
        v_mul_u32_u24 v{T0}, 1152, v{T0}
        v_lshrrev_b32 v{T1}, 5, v{L}
        v_lshl_add_u32 v{V_OA}, v{T1}, 4, v{T0}
        s_waitcnt lgkmcnt(0)
        s_mov_b32 s{S_WT+2}, {nf*64*1152}
        s_mov_b32 s{S_WT+3}, 0x00020000
        s_mov_b32 s{S_OUT+2}, 2359296
        s_mov_b32 s{S_OUT+3}, 0x00020000
        s_mul_i32 s{S_T0}, s{S_W}, {nf*16*1152}
        s_lshl_b32 s{S_T1}, s{S_CT}, 6
        s_add_u32 s{S_T0}, s{S_T0}, s{S_T1}
        s_mov_b32 s{S_PAR}, 0
        ''')
        nch = nf // 4
        def issue(c):
            for x in range(4):
                a(f's_add_u32 m0, s{S_LB}, {(c % 8) * 4096 + 1024*x}\ns_add_u32 s{S_T1}, s{S_T0}, {(64*c + 16*x) * 1152}')
                a(f'buffer_load_dwordx4 v{V_F}, s[{S_WT}:{S_WT+3}], s{S_T1} offen lds', tag=('w', c))
        for c in range(8): issue(c)
        for c in range(nch):
            a.wait_vm(('w', c))
            for u in range(4):
                f, b = ('a', 4 * (4*c + u)) if 4*c + u < 64 else ('v', V_WX + 4 * (4*c + u - 64))
                for y in range(2):
                    a(f'ds_read_b64_tr_b16 {vr(b + 2*y, 2, f)}, v{V_R} offset:{(c % 8) * 4096 + (32*(u//2) + 8*(u%2) + 2*y) * 64}')
            a.wait_lgkm()
            if c + 8 < nch: issue(c + 8)
        a.reset_counters()
    def task(self):
        a = self.a; nf = self.nf; ld = self.ldf
        img = WS_H if self.part == 'h' else WS_O
        a(f'''
        s_lshl_b32 s{S_T0}, s{S_SEG}, 2
        s_add_u32 s{S_T0}, s{S_T0}, s{S_W}
        s_mul_i32 s{S_T0}, s{S_T0}, {nf*1024}
        s_add_u32 s{S_T0}, s{S_T0}, {img}
        s_mul_i32 s{S_T2}, s{S_SEG}, 18
        s_add_u32 s{S_T2}, s{S_T2}, s{S_CT}
        s_lshl_b32 s{S_T2}, s{S_T2}, 2
        s_add_u32 s{S_T2}, s{S_T2}, s{S_W}
        s_lshl_b32 s{S_T2}, s{S_T2}, 10
        s_add_u32 s{S_T2}, s{S_T2}, {WS_BP}
        ''')
        if self.part == 'o': a(f'buffer_load_dwordx4 {vr(V_BP, 4)}, v{V_L16}, {WS}, s{S_T2} offen {ld}', tag='bp')
        def load(n):
            if n % 4 == 0 and n: a(f's_add_u32 s{S_T0}, s{S_T0}, 4096')
            a(f'buffer_load_dwordx4 {vr(V_RING + 4*(n % NRING), 4)}, v{V_L16}, {WS}, s{S_T0} offen offset:{1024*(n%4)} {ld}', tag=('f', n))
        for n in range(NRING): load(n)
        d = vr(V_D, 16)
        for n in range(nf):
            if n % 2 == 0: a.wait_vm(('f', n + 1))
            a(f'v_mfma_f32_32x32x16_bf16 {d}, {wf(n)}, {vr(V_RING + 4*(n % NRING), 4)}, {d if n else 0}')
            if n + NRING < nf: load(n + NRING)
        a(f'v_add_u32 v{V_T}, s{S_PAR}, v{V_RW}\nv_add_u32 v{V_T+1}, s{S_PAR}, v{V_RR}\ns_xor_b32 s{S_PAR}, s{S_PAR}, 16384')
        for q in range(4): a(f'ds_write_b128 v{V_T}, {vr(V_D + 4*q, 4)} offset:{1024*q}')
        a('s_waitcnt lgkmcnt(0)\ns_barrier')
        for w in range(4): a(f'ds_read_b128 {vr(V_RED + 4*w, 4)}, v{V_T+1} offset:{4096*w}')
        a(f'''
        s_mul_i32 s{S_T0}, s{S_SEG}, {32*1152}
        s_lshl_b32 s{S_T1}, s{S_CT}, 6
        s_add_u32 s{S_T0}, s{S_T0}, s{S_T1}
        s_lshr_b32 s{S_T1}, s{S_W}, 1
        s_lshl_b32 s{S_T1}, s{S_T1}, 5
        s_add_u32 s{S_T0}, s{S_T0}, s{S_T1}
        s_and_b32 s{S_T1}, s{S_W}, 1
        s_lshl_b32 s{S_T1}, s{S_T1}, 3
        s_add_u32 s{S_T0}, s{S_T0}, s{S_T1}
        s_waitcnt lgkmcnt(0)
        ''')
        for r in range(4):
            a(f'v_add_f32 v{V_RED+r}, v{V_RED+r}, v{V_RED+4+r}\nv_add_f32 v{V_RED+8+r}, v{V_RED+8+r}, v{V_RED+12+r}')
        for r in range(4): a(f'v_add_f32 v{V_RED+r}, v{V_RED+r}, v{V_RED+8+r}')
        if self.part == 'h':
            a(f'buffer_store_dwordx4 {vr(V_RED, 4)}, v{V_L16}, {WS}, s{S_T2} offen {self.stf}')
        else:
            for r in range(4): a(f'v_add_f32 v{V_RED+r}, v{V_RED+r}, v{V_BP+r}')
            a(f'v_cvt_pk_bf16_f32 v{V_RED}, v{V_RED}, v{V_RED+1}\nv_cvt_pk_bf16_f32 v{V_RED+1}, v{V_RED+2}, v{V_RED+3}')
            a(f'buffer_store_dwordx2 {vr(V_RED, 2)}, v{V_OA}, s[{S_OUT}:{S_OUT+3}], s{S_T0} offen')
        a.reset_counters()
```

```python
import re, random
from asmlib import Ins, regs_of

class Item:
    def __init__(self, text, extra_r=(), extra_w=(), name=None):
        self.lines = [l.strip() for l in text.strip('\n').split('\n') if l.strip()]
        self.ins = [Ins('    ' + l if not l.endswith(':') else l) for l in self.lines]
        self.r = set(extra_r); self.w = set(extra_w)
        self.kind = 'salu'; self.region = None; self.dsw = False
        self.barrier = False; self.vm = False; self.branch = False
        for i in self.ins:
            self.r |= set(i.r); self.w |= set(i.w)
            if i.kind in ('valu', 'mfma', 'ds', 'vmem'): self.kind = i.kind; self.r.add(('s', 'exec'))
            if i.op == 's_barrier': self.barrier = True
            if i.op.startswith('s_cbranch') or i.op == 's_branch': self.branch = True
            if i.op.startswith('s_cbranch_vcc'): self.r.add(('s', 'vcc'))
            if i.op.startswith('s_cbranch_scc'): self.r.add(('s', 'scc'))
            if i.op.startswith('s_cmp') or i.op.startswith('s_add') or i.op.startswith('s_and') or i.op.startswith('s_or') or i.op.startswith('s_lshl') or i.op.startswith('s_sub') or i.op.startswith('s_max'): self.w.add(('s', 'scc'))
            if i.kind == 'vmem' or (i.op == 's_waitcnt' and 'vmcnt' in i.text): self.vm = True
        if any(('s', 'exec') in i.w for i in self.ins):
            self.w.discard(('s', 'exec'))
        self.name = name
    def __repr__(self): return self.lines[0] if self.lines else '<empty>'

class Rec:
    def __init__(self, parent): self.items = []; self.p = parent
    def __call__(self, text, tag=None, atomic=False, r=(), w=()):
        ls = [l.strip() for l in text.strip('\n').split('\n') if l.strip()]
        if atomic or any('exec' in l or l.endswith(':') or l.startswith('s_cbranch') for l in ls) or not ls:
            self.items.append(Item(text, r, w))
        else:
            for l in ls: self.items.append(Item(l, r, w))
    def wait_lgkm(self, tag=None): pass
    def uid(self, p='L'): return self.p.uid(p)

def deps(items, region_of):
    n = len(items)
    for it in items:
        ds = [i for i in it.ins if i.kind == 'ds']
        if ds: it.region, it.cross = region_of(ds[0]); it.dsw = 'write' in ds[0].op
    pred = [set() for _ in range(n)]
    for j in range(n):
        b = items[j]
        for i in range(j):
            a = items[i]
            d = bool(a.w & (b.r | b.w)) or bool(a.r & b.w)
            if a.vm and b.vm: d = True
            if (a.barrier or a.branch) and (b.barrier or b.branch): d = True
            for x, y in ((a, b), (b, a)):
                if x.barrier and y.region and x.lines[-1].split(';')[-1].strip() not in y.cross: d = True
                if (x.barrier or x.branch) and y.vm: d = True
            if a.region and a.region == b.region and (a.dsw or b.dsw): d = True
            if (a.kind == 'mfma' and getattr(b, 'pin', 0)) or (b.kind == 'mfma' and getattr(a, 'pin', 0)): d = True
            if b.kind == 'mfma' and getattr(a, 'early', 0): d = True
            if d: pred[j].add(i)
    return pred

def legal(order, pred):
    pos = {x: k for k, x in enumerate(order)}
    return all(pos[p] < pos[j] for j in order for p in pred[j])

def mutate(order, pred, succ, movable, rng, nmoves=1):
    order = list(order)
    for _ in range(nmoves):
        for _try in range(50):
            x = rng.choice(movable)
            k = order.index(x)
            lo = k
            while lo > 0 and order[lo-1] not in pred[x]: lo -= 1
            hi = k
            while hi < len(order) - 1 and order[hi+1] not in succ[x]: hi += 1
            lo = max(lo, k - 10); hi = min(hi, k + 10)
            if lo == hi: continue
            t = rng.randint(lo, hi)
            if t == k: continue
            order.pop(k); order.insert(t, x)
            break
    return order

def emit(a, items, order):
    q = []
    for k in order:
        it = items[k]
        need = -1
        for idx, (dst, fence) in enumerate(q):
            if dst & (it.r | it.w) or (it.barrier and fence) or (it.branch and False): need = idx
        if need >= 0:
            n = min(len(q) - 1 - need, 15)
            a.lines.append(f'    s_waitcnt lgkmcnt({n})')
            q = q[len(q) - n:] if n else []
        for l, i in zip(it.lines, it.ins):
            a.lines.append('    ' + l if not l.endswith(':') else l)
            if i.kind == 'ds': q.append((set(i.w), it.region is not None))
    return q

def keys(items):
    seen = {}; out = []
    for it in items:
        t = ' '.join(it.lines)
        t = re.sub(r'(L_\w+?)(sc1)?\d\b', r'\1', t).replace('bitop3:0x80', 'bitop3').replace('bitop3:0xfe', 'bitop3')
        t = re.sub(r'v_or_b32 (v\d+), 1, v\d+', r'TAG \1', t); t = re.sub(r'v_and_b32 (v\d+), -2, v\d+', r'TAG \1', t)
        t = re.sub(r'v_cmp_ne_u32 vcc, [01],', 'v_cmp_ne_u32 vcc, P,', t)
        if 'L_ok' in t: t = 'CHK'
        t = t.replace('L_chain_lastsc1', 'L_chain_last')
        if 'dwordx2' in t: t = t.replace(' sc1', '')
        seen[t] = seen.get(t, 0) + 1
        out.append(f'{t} #{seen[t]}')
    return out
def order_from_keys(items, pred, klist):
    ks = keys(items); rank = {k: i for i, k in enumerate(klist)}
    r = []; last = -1
    for k in ks:
        if k in rank: last = rank[k]
        r.append(last if k in rank else last + 0.5)
    done = []; dset = set(); left = set(range(len(items)))
    while left:
        x = min((j for j in left if pred[j] <= dset), key=lambda j: (r[j], j))
        done.append(x); dset.add(x); left.remove(x)
    return done
```

```python
import sys
from asmlib import *
from common import *
import json
import gemm1, att, outg
import chain8 as chain4
NAME = 'gated_mix__memory_aug_recurrent_mem_tr__glu_gated_bilinear__prompt'
K = NAME + '_kernel'
args = sys.argv[2:]
opt = {x.split('=')[0]: int(x.split('=')[1]) for x in args if '=' in x}
hdr = open('cdna_kernels/' + NAME + '.s.ref').read().split('\n')
hdr = [l for l in hdr if l.startswith(';') and '@launch' not in l]
S_XCD, S_SLOT, S_IDX = 98, 99, 100
DBG = 's[8:11]'
a = Asm()
a.raw('\n'.join(hdr) + '\n; @launch grid=(256,1,1) block=(256,1,1) lds=163840\n.amdgcn_target "amdgcn-amd-amdhsa--gfx950"\n.text')
header(K, a, 256)
def stamp(i):
    if opt.get('st'):
        lab = a.uid('Lstp')
        a(f'''
        s_cmp_eq_u32 s13, 0
        s_cbranch_scc0 {lab}
        s_memrealtime s[94:95]
        s_lshl_b32 s96, s{S_SLOT}, 6
        s_add_u32 s96, s96, {WS_STAMP + 4*i}
        s_waitcnt lgkmcnt(0)
        v_mov_b32 v63, s94
        s_mov_b64 exec, 1
        buffer_store_dword v63, off, s[4:7], s96
        s_mov_b64 exec, -1
        {lab}:
        ''')
def stampr():
    lab = a.uid('Lstp')
    a(f'''
    s_cmp_eq_u32 s13, 0
    s_cbranch_scc0 {lab}
    s_memrealtime s[94:95]
    s_lshl_b32 s96, s{S_SLOT}, 6
    s_lshl_b32 s97, s{gemm1.S_CB}, 2
    s_add_u32 s96, s96, s97
    s_add_u32 s96, s96, {WS_STAMP + 32}
    s_waitcnt lgkmcnt(0)
    v_mov_b32 v31, s94
    s_mov_b64 exec, 1
    buffer_store_dword v31, off, s[4:7], s96
    s_mov_b64 exec, -1
    {lab}:
    ''')
def wait_poll(load, test, tmpv, sleep=8):
    lab = a.uid('Lw')
    a(f'''
    s_cmp_eq_u32 s13, 0
    s_cbranch_scc0 {lab}_ok
    s_mov_b32 s97, 0
    {lab}:
    {load}
    s_add_u32 s97, s97, 1
    s_cmp_gt_u32 s97, 0x20000
    s_cbranch_scc1 L_fail
    s_waitcnt vmcnt(0)
    {test}
    s_cbranch_vccz {lab}_ok
    s_sleep {sleep}
    s_branch {lab}
    {lab}_ok:
    s_barrier
    ''')
def wait_word(soff, mask, val, tmpv):
    wait_poll(f'buffer_load_dword v{tmpv}, off, {DBG}, s{soff} sc1', f'v_and_b32 v{tmpv}, {hex(mask)}, v{tmpv}\nv_cmp_ne_u32 vcc, {hex(val)}, v{tmpv}', tmpv)
def sg_off(dst, seg):
    a(f's_lshr_b32 s{dst}, s{seg}, 3\ns_lshl_b32 s{dst}, s{dst}, 5\ns_and_b32 s97, s{seg}, 4\ns_add_u32 s{dst}, s{dst}, s97\ns_add_u32 s{dst}, s{dst}, {D_SG(0)}')
def signal(soff, val, tmpv):
    lab = a.uid('Lsg')
    a(f'''
    s_waitcnt vmcnt(0)
    s_barrier
    s_cmp_eq_u32 s13, 0
    s_cbranch_scc0 {lab}
    s_mov_b64 exec, 1
    v_mov_b32 v{tmpv}, {val}
    buffer_atomic_add v{tmpv}, off, {DBG}, s{soff}
    s_mov_b64 exec, -1
    {lab}:
    ''')
a(f'''
s_getreg_b32 s{S_XCD}, hwreg(HW_REG_XCC_ID)
s_and_b32 s{S_XCD}, s{S_XCD}, 7
''')
if opt.get('fake'):
    a(f's_lshr_b32 s20, s2, 4\ns_cmp_eq_u32 s20, 3\ns_cselect_b32 s{S_XCD}, 5, s{S_XCD}')
a(f'''
s_cmp_eq_u32 s13, 0
s_cbranch_scc0 L_role_wait
s_lshl_b32 s20, s{S_XCD}, 5
s_mov_b64 exec, 1
v_mov_b32 v1, 1
buffer_atomic_add v1, off, {DBG}, s20 offset:{D_TK} sc0
s_waitcnt vmcnt(0)
v_readfirstlane_b32 s21, v1
s_add_u32 s{S_SLOT}, s20, s21
s_cmp_lt_u32 s21, 32
s_cbranch_scc1 L_role_pub
v_mov_b32 v1, 1
buffer_atomic_add v1, off, {DBG}, 0 offset:{D_OVF} sc0
s_waitcnt vmcnt(0)
v_readfirstlane_b32 s22, v1
s_mov_b32 s23, 0
L_role_all:
s_add_u32 s23, s23, 1
s_cmp_gt_u32 s23, 0x20000
s_cbranch_scc1 L_fail
s_mov_b32 s24, 0
''')
for x in range(8): a(f'buffer_load_dword v{2+x}, off, {DBG}, 0 offset:{D_TK + 32*x} sc1')
a('s_waitcnt vmcnt(0)')
for x in range(8): a(f'v_readfirstlane_b32 s{30+x}, v{2+x}')
for x in range(8): a(f's_add_u32 s24, s24, s{30+x}')
a('s_cmp_lt_u32 s24, 256\ns_cbranch_scc1 L_role_all')
for x in range(8):
    a(f'''
    s_min_u32 s25, s{30+x}, 32
    s_sub_u32 s26, 32, s25
    s_add_u32 s{S_SLOT}, s25, {32*x}
    s_add_u32 s{S_SLOT}, s{S_SLOT}, s22
    s_cmp_lt_u32 s22, s26
    s_cbranch_scc1 L_role_pub
    s_sub_u32 s22, s22, s26
    ''')
a(f'''
s_branch L_fail
L_role_pub:
v_mov_b32 v1, s{S_SLOT}
v_mov_b32 v2, 0
ds_write_b32 v2, v1
s_waitcnt lgkmcnt(0)
s_mov_b64 exec, -1
L_role_wait:
s_barrier
v_mov_b32 v2, 0
ds_read_b32 v1, v2
s_waitcnt lgkmcnt(0)
v_readfirstlane_b32 s{S_SLOT}, v1
s_and_b32 s{S_SLOT}, s{S_SLOT}, 255
s_barrier
''')
stamp(0)
a(f'''
s_cmp_lt_u32 s{S_SLOT}, 32
s_cbranch_scc0 L_worker
s_mov_b32 s{chain4.S_H}, s{S_SLOT}
''')
if opt.get('nochain'): a('s_endpgm')
a.reset_counters()
copt = {'d0': 0, 'd1': 32, 'g1': 32, 'd2': 40, 'd3': 80, 'sync': 1, 'keys': json.load(open('order8.json'))}; copt.update(opt)
c = chain4.Chain(a, opt=copt)
c.setup(); c.load_weights()
stamp(1)
c.first_m()
a('L_mode:')
a(f's_mov_b32 s{chain4.S_T2}, 0')
for x in range(8): a(f'buffer_load_dword v{chain4.Q(0)+x}, off, {DBG}, 0 offset:{D_TK + 32*x} sc1')
a('s_waitcnt vmcnt(0)')
for x in range(8): a(f'v_readfirstlane_b32 s{chain4.S_T0}, v{chain4.Q(0)+x}\ns_add_u32 s{chain4.S_T2}, s{chain4.S_T2}, s{chain4.S_T0}' + (f'\ns_mov_b32 s{chain4.S_T3}, s{chain4.S_T0}' if x == 0 else ''))
a(f'''
s_cmp_ge_u32 s{chain4.S_T3}, 32
s_cbranch_scc1 L_mode_fast
s_cmp_lt_u32 s{chain4.S_T2}, 256
s_cbranch_scc0 L_stepsc1
s_add_u32 s{chain4.S_SPIN}, s{chain4.S_SPIN}, 1
s_cmp_gt_u32 s{chain4.S_SPIN}, 0x60000
s_cbranch_scc0 L_mode
s_branch L_fail
L_mode_fast:
''')
stamp(2)
a.reset_counters()
c.loop('')
c.loop('sc1')
a('L_chain_done:')
stamp(3)
a('L_chain_fail:\nL_fail:\ns_endpgm')
a(f'''
L_worker:
s_sub_u32 s{S_IDX}, s{S_SLOT}, 32
s_and_b32 s{gemm1.S_MT}, s{S_IDX}, 7
s_lshr_b32 s{gemm1.S_GRP}, s{S_IDX}, 3
''')
g = gemm1.Gemm1(a, stf={0: 'sc1', 1: '', 2: 'nt', 3: 'sc1 nt'}[opt.get('stf', 0)], sync=True); g.rot = opt.get('rot', 0); g.ldf = {0: '', 1: 'nt'}[opt.get('wnt', 0)]; g.nost = opt.get('nost', 0); g.setup()
stamp(1)
g.main(after_block=(lambda: stampr()) if opt.get('st') else None)
stamp(2)
if opt.get('nochain'): a('s_waitcnt vmcnt(0)\ns_endpgm')
RH, RO = 12, opt.get('ro', 8)
a(f's_barrier\ns_cmp_lt_u32 s{S_IDX}, {18*RH}\ns_cbranch_scc0 L_att')
def split18():
    a(f's_mul_i32 s{outg.S_SEG}, s{S_IDX}, 3641\ns_lshr_b32 s{outg.S_SEG}, s{outg.S_SEG}, 16\ns_mul_i32 s{outg.S_CT}, s{outg.S_SEG}, 18\ns_sub_u32 s{outg.S_CT}, s{S_IDX}, s{outg.S_CT}')
split18()
o = outg.Out(a, 'h', ldf='sc1', stf='sc1'); o.setup()
a('L_down_loop:')
a(f's_lshr_b32 s30, s{outg.S_SEG}, 3\ns_lshl_b32 s30, s30, 5\ns_add_u32 s30, s30, {D_MT(0)}')
wait_word(30, 0xff0000, 72 << 16, outg.V_T + 2)
o.task()
sg_off(30, outg.S_SEG)
signal(30, 0x10000, outg.V_T + 2)
a(f's_add_u32 s{outg.S_SEG}, s{outg.S_SEG}, {RH}\ns_cmp_lt_u32 s{outg.S_SEG}, 64\ns_cbranch_scc1 L_down_loop')
stamp(3)
a(f's_cmp_lt_u32 s{S_IDX}, {18*RO}\ns_cbranch_scc0 L_att')
split18()
o = outg.Out(a, 'o', ldf='sc1'); o.setup()
stamp(4)
a('L_out_loop:')
sg_off(30, outg.S_SEG)
wait_word(30, 0xffff00, (72 << 16) | (32 << 8), outg.V_T + 2)
o.task()
a(f's_add_u32 s{outg.S_SEG}, s{outg.S_SEG}, {RO}\ns_cmp_lt_u32 s{outg.S_SEG}, 64\ns_cbranch_scc1 L_out_loop')
a('s_waitcnt vmcnt(0)')
stamp(5)
a('s_endpgm')
NA = 224 - 18 * RO
a(f'L_att:')
t = att.Att(a, ldf='sc1', stf='sc1'); t.setup()
a(f's_sub_u32 s60, s{S_IDX}, {18*RO}\ns_mov_b32 s61, {D_INIT}\ns_mov_b32 s62, {WS_FLAG}\nv_and_b32 v{att.V_T+8}, 0x1f0, v{att.V_L16}\nv_lshlrev_b32 v{att.V_T+8}, 3, v{att.V_T+8}')
wait_word(61, 0xff, 32, att.V_T)
a('L_att_loop:')
a(f'''
s_lshr_b32 s{att.S_SEG}, s60, 3
s_and_b32 s{att.S_HEAD}, s60, 7
s_lshl_b32 s{att.S_HEAD}, s{att.S_HEAD}, 2
s_add_u32 s{att.S_HEAD}, s{att.S_HEAD}, s13
s_lshr_b32 s61, s{att.S_SEG}, 3
s_lshl_b32 s61, s61, 5
s_add_u32 s61, s61, {D_MT(0)}
''')
wait_word(61, 0xff00, 32 << 8, att.V_T)
sg_off(61, att.S_SEG)
wait_poll(f'buffer_load_dword v{att.V_T}, v{att.V_T+8}, s[4:7], s62 offen sc1', f'v_cmp_ge_u32 vcc, s{att.S_SEG}, v{att.V_T}', att.V_T)
t.task()
signal(61, 0x100, att.V_T)
a(f's_add_u32 s60, s60, {NA}\ns_cmp_lt_u32 s60, 512\ns_cbranch_scc1 L_att_loop')
stamp(5)
a('s_endpgm')
a.hoist()
out = a.finish() + '.section .rodata,"a"\n.p2align 6\n' + descriptor(K)
open(sys.argv[1], 'w').write(out)
print(out.count('\n'), 'lines', len(out), 'bytes')
```
